```python
import torch

def _softmax(x, axis=-1):
    return torch.softmax(x, dim=axis)
def _gelu(x):
    return torch.nn.functional.gelu(x, approximate="tanh")
def _silu(x):
    return torch.nn.functional.silu(x)
def _sigmoid(x):
    return torch.sigmoid(x)
def _layernorm(x, axis=-1, eps=1e-5):
    m = x.mean(dim=axis, keepdim=True)
    v = x.var(dim=axis, keepdim=True, unbiased=False)
    return (x - m) / torch.sqrt(v + eps)
def _scatter_add(tgt, idx, src, axis=0):
    return tgt.clone().index_add_(axis, idx, src)
def _segment_sum(src, seg, n):
    out = torch.zeros((n,) + src.shape[1:], dtype=src.dtype)
    return out.index_add_(0, seg, src)
def _pad(x, pw):
    flat = tuple(v for pair in reversed(pw) for v in pair)
    return torch.nn.functional.pad(x, flat)

kernel_name = 'parallel_sum__linear_attn_block__glu_gated_bilinear__prompt'

def setup_inputs():

    _w = (lambda a: (lambda t: t.to(torch.bfloat16) if t.is_floating_point() else t)(torch.as_tensor(a)))
    def _A_setup():
        B, S, D = 1, 2048, 640
        return {
            "x": _w((lambda *s: torch.randn(*s, dtype=torch.bfloat16) * 0.05)(B, S, D)),
            "wqkv": _w((lambda *s: torch.randn(*s, dtype=torch.bfloat16) * 0.05)(D, 3 * D)),
            "wo": _w((lambda *s: torch.randn(*s, dtype=torch.bfloat16) * 0.05)(D, D)),
        }
    _A_in = _A_setup()

    def _B_setup():
        B, S, D, F = 1, 2048, 640, 1728
        return {
            "x": _w((lambda *s: torch.randn(*s, dtype=torch.bfloat16) * 0.05)(B, S, D)),
            "w_gate": _w((lambda *s: torch.randn(*s, dtype=torch.bfloat16) * 0.2)(D, F) * (D ** -0.5)),
            "w_up": _w((lambda *s: torch.randn(*s, dtype=torch.bfloat16) * 0.2)(D, F) * (D ** -0.5)),
            "w_down": _w((lambda *s: torch.randn(*s, dtype=torch.bfloat16) * 0.2)(F, D) * (F ** -0.5)),
        }
    _B_in = _B_setup()

    return {
        "A_x": _A_in["x"],
        "A_wqkv": _A_in["wqkv"],
        "A_wo": _A_in["wo"],
        "B_x": _B_in["x"],
        "B_w_gate": _B_in["w_gate"],
        "B_w_up": _B_in["w_up"],
        "B_w_down": _B_in["w_down"],
    }

def reference(A_x, A_wqkv, A_wo, B_x, B_w_gate, B_w_up, B_w_down):
    def _A_ref(x, wqkv, wo):
        B, S, D = x.shape
        H = 32; Dh = D // H
        qkv = (lambda x, *d: x.permute(*d))((x @ wqkv).reshape(B, S, 3, H, Dh), 2, 0, 3, 1, 4)
        q, k, v = qkv[0], qkv[1], qkv[2]
        phi = lambda t: torch.where(t > 0, t + 1, torch.exp(t)) + 1e-6
        pq, pk = phi(q), phi(k)
        kv = torch.einsum("bhsd,bhse->bhde", pk, v)
        z = torch.einsum("bhsd->bhd", pk)
        num = torch.einsum("bhqd,bhde->bhqe", pq, kv)
        den = torch.einsum("bhqd,bhd->bhq", pq, z)[..., None] + 1e-6
        o = num / den
        return (lambda x, *d: x.permute(*d))(o, 0, 2, 1, 3).reshape(B, S, D) @ wo

    def _B_ref(x, w_gate, w_up, w_down):
        g = torch.einsum("bsd,df->bsf", x, w_gate)
        u = torch.einsum("bsd,df->bsf", x, w_up)
        h = g * u
        return torch.einsum("bsf,fd->bsd", h, w_down)

    x = A_x
    xn = _layernorm(x, axis=-1)
    return x + _A_ref(xn, A_wqkv, A_wo) + _B_ref(xn, B_w_gate, B_w_up, B_w_down)
```

```python
import re

def v(i, n=1):
    return f"v{i}" if n == 1 else f"v[{i}:{i+n-1}]"
def a(i, n=1):
    return f"a{i}" if n == 1 else f"a[{i}:{i+n-1}]"
def s(i, n=1):
    return f"s{i}" if n == 1 else f"s[{i}:{i+n-1}]"

class Asm:
    def __init__(self):
        self.lines = []
        self._uid = 0
    def __call__(self, text):
        for ln in text.split("\n"):
            ln = ln.strip()
            if ln:
                self.lines.append(ln)
    def label(self, name):
        self.lines.append(name + ":")
    def uid(self, base):
        self._uid += 1
        return f"{base}_{self._uid}"
    def text(self):
        out = []
        for ln in self.lines:
            if ln.endswith(":") or ln.startswith(".") or ln.startswith(";"):
                out.append(ln)
            else:
                out.append("    " + ln)
        return "\n".join(out) + "\n"

_REG = re.compile(r"\b([vas])(\d+)\b|\b([vas])\[(\d+):(\d+)\]|\b(vcc|exec|m0|scc)\b")

def regs_of(op):
    out = set()
    for m in _REG.finditer(op):
        if m.group(1):
            out.add((m.group(1), int(m.group(2))))
        elif m.group(3):
            for i in range(int(m.group(4)), int(m.group(5)) + 1):
                out.add((m.group(3), i))
        else:
            out.add((m.group(6), 0))
    return out

TRANS = ("v_exp_f32", "v_log_f32", "v_rcp_f32", "v_rsq_f32", "v_sqrt_f32", "v_sin_f32", "v_cos_f32", "v_rcp_iflag_f32")

class Ins:
    def __init__(self, text):
        self.text = text
        t = text.split(";")[0].strip()
        parts = t.split(None, 1)
        self.op = parts[0]
        ops = parts[1] if len(parts) > 1 else ""
        self.ops = [o.strip() for o in re.split(r",(?![^\[]*\])", ops)] if ops else []
        op = self.op
        self.mfma = op.startswith("v_mfma")
        self.valu = op.startswith("v_") and not self.mfma
        self.salu = op.startswith("s_")
        self.ds = op.startswith("ds_")
        self.vmem = op.startswith(("buffer_", "global_", "flat_"))
        self.trans = any(op.startswith(x) for x in TRANS)
        self.dpp = "dpp" in op or "row_" in t or "quad_perm" in t
        self.defs, self.uses = set(), set()
        o = self.ops
        R = lambda x: regs_of(x)
        if self.mfma:
            self.defs = R(o[0]); self.srcab = R(o[1]) | R(o[2]); self.srcc = R(o[3]); self.uses = self.srcab | self.srcc
            self.passes = 8 if "32x32" in op else 4
        elif self.valu:
            if op.startswith("v_cmp"):
                self.defs = R(o[0]);
                for x in o[1:]: self.uses |= R(x)
                if op.startswith("v_cmpx"): self.defs |= {("exec", 0)}
            elif op.startswith("v_permlane") and "swap" in op:
                self.defs = R(o[0]) | R(o[1]); self.uses = set(self.defs)
            else:
                self.defs = R(o[0])
                rest = o[1:]
                if op.startswith(("v_add_co", "v_sub_co", "v_addc_co", "v_subb_co", "v_subrev_co")):
                    self.defs |= R(o[1]); rest = o[2:]
                for x in rest: self.uses |= R(x)
                if op.startswith(("v_fmac", "v_dot2c", "v_mac", "v_pk_fmac", "v_writelane")) or self.dpp or "sdwa" in op:
                    self.uses |= R(o[0])
                if op.startswith("v_cndmask") and len(o) == 3:
                    self.uses |= {("vcc", 0)}
        elif self.ds:
            if op.startswith(("ds_read", "ds_bpermute", "ds_permute", "ds_swizzle")):
                self.defs = R(o[0])
                for x in o[1:]: self.uses |= R(x)
            else:
                for x in o: self.uses |= R(x)
        elif self.vmem:
            lds = bool(re.search(r"\blds\b", t)) or "load_lds" in op
            isload = "load" in op and not lds
            isatomret = "atomic" in op and "sc0" in t
            if op.startswith("buffer_wbl2") or op.startswith("buffer_inv"):
                pass
            elif isload:
                self.defs = R(o[0])
                for x in o[1:]: self.uses |= R(x)
            elif isatomret and op.startswith("global"):
                self.defs = R(o[0])
                for x in o[1:]: self.uses |= R(x)
            else:
                for x in o: self.uses |= R(x)
                if isatomret: self.defs = R(o[0])
            self.lds = lds
            self.store = "store" in op
        elif self.salu:
            if op in ("s_nop", "s_waitcnt", "s_barrier", "s_endpgm", "s_branch", "s_sleep", "s_setprio") or op.startswith("s_cbranch"):
                pass
            elif op.startswith("s_cmp") or op.startswith("s_bitcmp"):
                for x in o: self.uses |= R(x)
            else:
                self.defs = R(o[0])
                for x in o[1:]: self.uses |= R(x)
                if "saveexec" in op: self.defs |= {("exec", 0)}
    def states(self):
        if self.op == "s_nop":
            return int(self.ops[0], 0) + 1
        return 1

def _need(p, c):
    n = 0
    vd = {r for r in p.defs if r[0] in "va"}
    sd = {r for r in p.defs if r[0] in ("s", "vcc")}
    if p.valu:
        if c.mfma and vd & c.uses: n = max(n, 2)
        if c.op.startswith(("v_readlane", "v_readfirstlane")) and vd & c.uses: n = max(n, 1)
        if c.op.startswith("v_permlane") and vd & c.uses: n = max(n, 2)
        if c.valu and c.dpp and vd & c.uses: n = max(n, 2)
        if p.trans and c.valu and not c.trans and vd & c.uses: n = max(n, 1)
        if p.trans and (c.vmem or c.ds) and vd & c.uses: n = max(n, 1)
        if sd and c.vmem and sd & c.uses: n = max(n, 5)
        if sd and c.valu and sd & c.uses: n = max(n, 2)
        if ("exec", 0) in p.defs and (c.mfma or c.op.startswith("v_permlane")): n = max(n, 4)
        if p.op.startswith("v_dot") and vd & (c.uses | c.defs) and (c.valu or c.mfma or c.ds or c.vmem):
            if c.op == p.op and not (vd & (c.uses - regs_of(c.ops[0]))) : pass
            else: n = max(n, 3)
        if ("sdwa" in p.op or "op_sel" in p.text) and c.valu and vd & c.uses and not p.op.startswith("v_pk"): n = max(n, 1)
    if p.mfma:
        P = p.passes
        raw = {4: 8, 8: 12}[P]
        if c.mfma:
            if vd & c.srcab: n = max(n, raw)
            if vd & c.srcc and not (p.defs == c.srcc and p.passes == c.passes): n = max(n, {4: 6, 8: 10}[P])
        elif (c.valu or c.ds or c.vmem) and (vd & (c.uses | c.defs)): n = max(n, raw)
        if c.valu and (p.srcc & c.defs): n = max(n, {4: 3, 8: 7}[P])
    if p.salu and ("m0", 0) in p.defs and c.vmem and getattr(c, "lds", False): n = max(n, 1)
    if p.salu and ("exec", 0) in p.defs and c.valu and c.dpp: n = max(n, 0)
    if p.vmem and getattr(p, "store", False) and ("x4" in p.op or "x3" in p.op):
        data = regs_of(p.ops[0]) if p.op.startswith("buffer") else regs_of(p.ops[1])
        if c.valu and data & c.defs: n = max(n, 2)
        elif (c.ds or c.vmem) and data & c.defs: n = max(n, 1)
    return n

def check_seq(seq, where=""):
    probs = []
    for i, c in enumerate(seq):
        dist = 0
        for j in range(i - 1, max(-1, i - 24), -1):
            p = seq[j]
            need = _need(p, c)
            if need > dist:
                probs.append(f"{where}: need {need} have {dist}: [{p.text}] -> [{c.text}]")
            dist += p.states()
            if dist > 20: break
    return probs

def check_hazards(lines):
    ins, labels = [], {}
    for ln in lines:
        t = ln.split(";")[0].strip()
        if not t or t.startswith("."):
            if t.endswith(":"): labels[t[:-1]] = len(ins)
            continue
        if t.endswith(":"):
            labels[t[:-1]] = len(ins); continue
        ins.append(Ins(t))
    probs = []
    start = 0
    for i, x in enumerate(ins):
        if x.op in ("s_endpgm", "s_branch"):
            probs += check_seq(ins[start:i + 1], "lin"); start = i + 1
    probs += check_seq(ins[start:], "lin")
    for i, x in enumerate(ins):
        if x.op == "s_branch" or x.op.startswith("s_cbranch"):
            tgt = labels.get(x.ops[0])
            if tgt is None: continue
            seq = ins[max(0, i - 24):i + 1] + ins[tgt:tgt + 24]
            n0 = len(ins[max(0, i - 24):i + 1])
            for pr in check_seq(seq, f"edge->{x.ops[0]}"):
                probs.append(pr)
    return sorted(set(probs))


PROF_BASE = 0x1400000
class Prof:
    on = False
    @staticmethod
    def stamp(A, k, real=False):
        if not Prof.on: return
        A(f"s_{'memrealtime' if real else 'memtime'} s[{72 + 2 * k}:{73 + 2 * k}]")
        A("s_waitcnt lgkmcnt(0)")
    @staticmethod
    def flush(A, n, wave_sreg, last, base=PROF_BASE):
        if not Prof.on: return
        A("s_waitcnt vmcnt(0)")
        Prof.stamp(A, last); Prof.stamp(A, last + 1, real=True)
        A(f"s_lshl_b32 s70, s2, 3\ns_add_u32 s70, s70, {wave_sreg}\ns_lshl_b32 s70, s70, 6\ns_add_u32 s70, s70, {base}")
        A("s_mov_b64 exec, 1\ns_mov_b32 s14, 0x2000000\nv_mov_b32 v1, 0")
        for k in range(n):
            A(f"v_mov_b32 v0, s{72 + 2 * k}\ns_nop 0\nbuffer_store_dword v0, v1, s[12:15], s70 offen offset:{4 * k}\ns_nop 1")
```

```python
NAME = "parallel_sum__linear_attn_block__glu_gated_bilinear__prompt"
HF   = 0x0000000
PQF  = 0x0700000
WDF  = 0x0A00000
WOF  = 0x0D00000
KVP  = 0x0F00000
STAT = 0x1000000
MF   = 0x1100000
ZP   = 0x1200000
WS_USED = 0x1300000
KVP_BLK = 1792

X_BYTES   = 2048 * 640 * 2
WQKV_BYTES = 640 * 1920 * 2
WO_BYTES  = 640 * 640 * 2
WG_BYTES  = 640 * 1728 * 2
WD_BYTES  = 1728 * 640 * 2

def kernel_desc(name, vgpr, sgpr, accum=None):
    if accum is None: accum = (vgpr + 3) // 4 * 4
    return f""".amdhsa_kernel {name}
  .amdhsa_next_free_vgpr {vgpr}
  .amdhsa_next_free_sgpr {sgpr}
  .amdhsa_accum_offset {accum}
  .amdhsa_group_segment_fixed_size 0
  .amdhsa_kernarg_size 80
  .amdhsa_user_sgpr_count 2
  .amdhsa_user_sgpr_kernarg_segment_ptr 1
  .amdhsa_system_sgpr_workgroup_id_x 1
  .amdhsa_float_denorm_mode_32 3
.end_amdhsa_kernel
"""
```

```python
from asmlib import Asm, v, a, s, Prof
from common import *

KN = "k1_kernel"
EXP16 = False
WSLOT = 24832
SEGB = 12288 + 128
XBASE = 4 * WSLOT
XSLOT = 16384
CSB = XBASE + 3 * XSLOT
LDS_BYTES = 163840

V_L = 1
V_T0 = 2
V_CS = 92
V_DX = 98
V_WR = 100
V_XR = 104
V_DW = 108
V_WF = 112
V_XF = 136
V_ACC = 160

S_W = 3; S_RB = 18; S_TYPE = 19; S_C = 20
S_WSO = 21; S_WSTEP = 22; S_XSO = 23; S_WDST = 24; S_WPAIR = 25; S_XDST = 26
S_XCUR = 27; S_XPREV = 28; S_IT = 29; S_WDELTA = 30; S_T = 31
S_SH = 48; S_TB = 49; S_ONES = 50; S_XG = 51; S_XD = 52

def acc(T, t): return V_ACC + (T * 3 + t) * 16
def wf(st, t): return V_WF + st * 12 + t * 4
def xf(st, T): return V_XF + st * 8 + T * 4

class LQ:
    def __init__(self, A): self.A = A; self.q = []
    def issue(self, text, regs):
        self.A(text); self.q.append(set(regs))
    def need(self, regs):
        regs = set(regs); last = -1
        for i, r in enumerate(self.q):
            if r & regs: last = i
        if last >= 0:
            n = len(self.q) - 1 - last
            self.A(f"s_waitcnt lgkmcnt({n})")
            self.q = self.q[last + 1:]
    def drain(self): self.q = []

def rng(b, n): return range(b, b + n)

def reads_for(b, st, P, k2, nextit=False):
    R = []
    kap = 2 * P + k2
    for T in range(2):
        R.append((f"ds_read_b128 {v(xf(st, T), 4)}, {v(V_XR + kap)} offset:{T * 4096}", rng(xf(st, T), 4)))
    for t in range(b):
        for p in range(2):
            off = P * WSLOT + (16 * k2 + 4 * p) * 384
            R.append((f"ds_read_b64_tr_b16 {v(wf(st, t) + 2 * p, 2)}, {v(V_WR + t)} offset:{off}", rng(wf(st, t) + 2 * p, 2)))
    return R

def kstep(A, lq, b, st, extra, csmode, k2, waits=True):
    mf = [(T, t) for t in range(b) for T in range(2)]
    extra = list(extra)
    per = -(-len(extra) // len(mf))
    for n, (T, t) in enumerate(mf):
        if waits:
            lq.need(list(rng(wf(st, t), 4)) + list(rng(xf(st, T), 4)))
        if EXP16:
            for hh in range(2):
                ac = acc(T, t) + 8 * k2 + 4 * hh
                A(f"v_mfma_f32_16x16x32_bf16 {v(ac, 4)}, {v(wf(st, t), 4)}, {v(xf(st, T), 4)}, {v(ac, 4)}")
        else:
            A(f"v_mfma_f32_32x32x16_bf16 {v(acc(T, t), 16)}, {v(wf(st, t), 4)}, {v(xf(st, T), 4)}, {v(acc(T, t), 16)}")
        for _ in range(per):
            if extra:
                e = extra.pop(0)
                e() if callable(e) else A(e)
        if csmode == "full" and T == 1:
            for j in range(4):
                A(f"v_dot2c_f32_bf16 {v(V_CS + t)}, {s(S_ONES)}, {v(wf(st, t) + j)}")
    assert not extra
    if csmode == "split":
        lab = A.uid("L_cs")
        A(f"s_cmp_lg_u32 {s(S_SH)}, {k2}")
        A(f"s_cbranch_scc1 {lab}")
        for t in range(b):
            for j in range(4):
                A(f"v_dot2c_f32_bf16 {v(V_CS + t)}, {s(S_ONES)}, {v(wf(st, t) + j)}")
        A.label(lab)

def dma_batch(P):
    L = []
    L.append(f"s_add_u32 {s(S_T)}, {s(S_WDST)}, {s(S_WPAIR)}" + (f"\ns_add_u32 {s(S_T)}, {s(S_T)}, {WSLOT}" if P else "") + f"\ns_mov_b32 m0, {s(S_T)}\ns_nop 0")
    for j in range(3):
        L.append(f"buffer_load_dwordx4 {v(V_DW + j)}, {s(4, 4)}, {s(S_WSO)} offen offset:{1024 * j} lds")
    slot = S_XPREV if P == 0 else S_XCUR
    half = 1 if P == 0 else 0
    L.append(f"s_add_u32 {s(S_T)}, {s(S_XDST)}, {s(slot)}" + (f"\ns_add_u32 {s(S_T)}, {s(S_T)}, {1024}" if half else "") +
             f"\ns_mov_b32 m0, {s(S_T)}\ns_add_u32 {s(S_WSO)}, {s(S_WSO)}, {s(S_WSTEP)}"
             f"\ns_cmp_lt_u32 {s(S_XG)}, 10\ns_cselect_b32 {s(S_T)}, {s(S_XD)}, 0x7f000000")
    L.append(f"buffer_load_dwordx4 {v(V_DX + half)}, {s(8, 4)}, {s(S_T)} offen lds")
    if P == 0:
        L.append(f"s_add_u32 {s(S_XG)}, {s(S_XG)}, 1\ns_add_u32 {s(S_XD)}, {s(S_XD)}, 128")
    return L

def main_loop(A, b, csmode):
    lab = A.uid("L_loop")
    lq = LQ(A)
    for txt, regs in reads_for(b, 0, 0, 0):
        lq.q.append(set(regs))
    A.label(lab)
    for P in range(2):
        ex = [lambda r=r: lq.issue(*r) for r in reads_for(b, 1, P, 1)]
        kstep(A, lq, b, 0, ex, csmode, 0)
        A("s_waitcnt vmcnt(8) lgkmcnt(0)")
        lq.drain()
        A("s_barrier")
        pre = []
        if P == 1:
            for t in range(3):
                pre.append(f"v_add_u32 {v(V_WR + t)}, {s(S_WDELTA)}, {v(V_WR + t)}")
            pre.append(f"s_mov_b32 {s(S_T)}, {XSLOT}\ns_cmp_eq_u32 {s(S_XCUR)}, {2 * XSLOT}\ns_cmov_b32 {s(S_T)}, {hex(-2 * XSLOT & 0xffffffff)}")
            for k in range(4):
                pre.append(f"v_add_u32 {v(V_XR + k)}, {s(S_T)}, {v(V_XR + k)}")
            for x in pre: A(x)
            nxt = reads_for(b, 0, 0, 0)
        else:
            nxt = reads_for(b, 0, 1, 0)
        ex = [lambda r=r: lq.issue(*r) for r in nxt]
        d = dma_batch(P)
        kstep(A, lq, b, 1, ex + d, csmode, 1, waits=False)
        if P == 1:
            A(f"s_mov_b32 {s(S_XPREV)}, {s(S_XCUR)}")
            A(f"s_add_u32 {s(S_XCUR)}, {s(S_XCUR)}, {XSLOT}")
            A(f"s_cmp_eq_u32 {s(S_XCUR)}, {3 * XSLOT}\ns_cselect_b32 {s(S_XCUR)}, 0, {s(S_XCUR)}")
            A(f"s_sub_u32 {s(S_WDELTA)}, 0, {s(S_WDELTA)}")
            A(f"s_xor_b32 {s(S_WPAIR)}, {s(S_WPAIR)}, {2 * WSLOT}")
    A(f"s_add_u32 {s(S_IT)}, {s(S_IT)}, 1")
    A(f"s_cmp_lt_u32 {s(S_IT)}, 10")
    A(f"s_cbranch_scc1 {lab}")

def setup_main(A):
    A(f"""
    s_and_b32 s32, s2, 7
    s_lshr_b32 s33, s2, 3
    s_and_b32 s34, s32, 1
    s_lshr_b32 s35, s32, 1
    s_lshl_b32 {s(S_RB)}, s34, 3
    s_and_b32 s34, s33, 7
    s_add_u32 {s(S_RB)}, {s(S_RB)}, s34
    s_lshr_b32 s33, s33, 3
    s_lshl_b32 s34, s35, 2
    s_add_u32 s34, s34, s33
    s_cmp_eq_u32 s35, 3
    s_cselect_b32 s33, 1, 0
    s_sub_u32 s34, s34, s33
    """)
    A(f"""
    s_mov_b32 {s(S_TYPE)}, 0
    s_mov_b32 {s(S_C)}, s34
    s_cmp_ge_u32 s34, 9
    s_cselect_b32 {s(S_TYPE)}, 1, {s(S_TYPE)}
    s_cselect_b32 s33, 9, 0
    s_cmp_ge_u32 s34, 11
    s_cselect_b32 {s(S_TYPE)}, 2, {s(S_TYPE)}
    s_cselect_b32 s33, 11, s33
    s_sub_u32 {s(S_C)}, s34, s33
    """)
    A(f"""
    s_lshr_b32 s32, {s(S_W)}, 2
    s_and_b32 {s(S_SH)}, {s(S_W)}, 1
    s_cmp_eq_u32 {s(S_TYPE)}, 0
    s_cbranch_scc0 L_setup_qkv
    s_cmp_eq_u32 s32, 0
    s_cselect_b32 s4, s40, s42
    s_cselect_b32 s5, s41, s43
    s_mov_b32 s6, {WG_BYTES}
    s_mov_b32 s33, 3456
    s_mul_i32 {s(S_WSO)}, {s(S_C)}, 384
    s_mov_b32 s34, 24
    s_mov_b32 s35, 3
    s_branch L_setup_done
    L_setup_qkv:
    s_mov_b32 s4, s38
    s_mov_b32 s5, s39
    s_mov_b32 s6, {WQKV_BYTES}
    s_mov_b32 s33, 3840
    s_mov_b32 s34, 20
    s_mov_b32 s35, 2
    s_cmp_eq_u32 {s(S_TYPE)}, 1
    s_cbranch_scc0 L_setup_kv
    s_mul_i32 {s(S_WSO)}, {s(S_C)}, 640
    s_mul_i32 s53, s32, 320
    s_add_u32 {s(S_WSO)}, {s(S_WSO)}, s53
    s_branch L_setup_done
    L_setup_kv:
    s_mul_i32 {s(S_WSO)}, {s(S_C)}, 320
    s_mul_i32 s53, s32, 1280
    s_add_u32 {s(S_WSO)}, {s(S_WSO)}, s53
    s_add_u32 {s(S_WSO)}, {s(S_WSO)}, 1280
    L_setup_done:
    s_mov_b32 s7, 0x20000
    s_lshl_b32 {s(S_WSTEP)}, s33, 5
    s_mov_b32 s8, s36
    s_mov_b32 s9, s37
    s_mov_b32 s10, {X_BYTES}
    s_mov_b32 s11, 0x20000
    s_mul_i32 {s(S_XSO)}, {s(S_RB)}, {128 * 1280}
    s_mov_b32 {s(S_ONES)}, 0x3f803f80
    """)
    A(f"""
    s_lshr_b32 s53, {s(S_W)}, 1
    s_and_b32 s53, s53, 1
    s_cmp_eq_u32 s32, 0
    s_cselect_b32 s54, 3, s35
    s_mul_i32 s53, s53, s54
    s_cselect_b32 s54, 0, 6
    s_add_u32 {s(S_TB)}, s53, s54
    """)
    L = V_L
    for j in range(3):
        A(f"""
        v_add_u32 v2, {64 * j}, {v(L)}
        v_mul_u32_u24 v3, 2731, v2
        v_lshrrev_b32 v3, 16, v3
        v_mul_u32_u24 v4, 24, v3
        v_sub_u32 v4, v2, v4
        v_and_b32 v5, 3, v3
        v_lshlrev_b32 v5, 1, v5
        v_xor_b32 v5, v5, v4
        v_and_b32 v5, 7, v5
        v_and_b32 v4, 24, v4
        v_or_b32 v4, v4, v5
        s_and_b32 s53, {s(S_W)}, 3
        s_lshl_b32 s53, s53, 3
        v_add_u32 v3, s53, v3
        v_mul_lo_u32 v3, v3, s33
        v_lshl_add_u32 v3, v4, 4, v3
        v_subrev_u32 v3, {1024 * j}, v3
        v_cmp_gt_u32 vcc, s34, v4
        v_mov_b32 v5, 0x40000000
        s_nop 1
        v_cndmask_b32 {v(V_DW + j)}, v5, v3, vcc
        """)
    A(f"""
    v_lshrrev_b32 v2, 3, {v(L)}
    s_lshl_b32 s53, {s(S_W)}, 4
    v_add_u32 v2, s53, v2
    v_mul_u32_u24 v3, 1280, v2
    v_lshrrev_b32 v4, 4, {v(L)}
    v_xor_b32 v4, v4, {v(L)}
    v_and_b32 v4, 7, v4
    v_lshl_add_u32 {v(V_DX)}, v4, 4, v3
    v_xor_b32 v4, 4, v4
    v_lshl_add_u32 v4, v4, 4, v3
    v_add_u32 {v(V_DX + 1)}, {8 * 1280}, v4
    """)
    A(f"""
    s_mul_i32 {s(S_WDST)}, s32, {SEGB}
    s_and_b32 s53, {s(S_W)}, 3
    s_mul_i32 s53, s53, 3072
    s_add_u32 {s(S_WDST)}, {s(S_WDST)}, s53
    s_lshl_b32 {s(S_XDST)}, {s(S_W)}, 11
    s_add_u32 {s(S_XDST)}, {s(S_XDST)}, {XBASE}
    """)
    def wdma(slot):
        A(f"s_add_u32 {s(S_T)}, {s(S_WDST)}, {slot * WSLOT}\ns_mov_b32 m0, {s(S_T)}\ns_nop 0")
        for j in range(3):
            A(f"buffer_load_dwordx4 {v(V_DW + j)}, {s(4, 4)}, {s(S_WSO)} offen offset:{1024 * j} lds")
        A(f"s_add_u32 {s(S_WSO)}, {s(S_WSO)}, {s(S_WSTEP)}")
    def xdma(g, half):
        A(f"s_add_u32 {s(S_T)}, {s(S_XDST)}, {g * XSLOT + half * 1024}\ns_mov_b32 m0, {s(S_T)}\ns_add_u32 {s(S_T)}, {s(S_XSO)}, {g * 128}")
        A(f"buffer_load_dwordx4 {v(V_DX + half)}, {s(8, 4)}, {s(S_T)} offen lds")
    xdma(0, 0); xdma(0, 1); wdma(0); wdma(1); xdma(1, 0); xdma(1, 1); wdma(2); wdma(3); xdma(2, 0)
    A(f"""
    v_lshrrev_b32 v2, 4, {v(L)}
    v_and_b32 v3, 1, v2
    v_lshrrev_b32 v2, 1, v2
    v_bfe_u32 v4, {v(L)}, 2, 2
    v_lshl_add_u32 v5, v2, 3, v4
    v_mul_u32_u24 v5, 384, v5
    v_mul_u32_u24 v3, {SEGB}, v3
    v_add_u32 v5, v5, v3
    v_and_b32 v6, 1, {v(L)}
    v_bfe_u32 v7, {v(L)}, 1, 1
    v_lshl_add_u32 v5, v7, 3, v5
    v_lshlrev_b32 v4, 1, v4
    """)
    for t in range(3):
        A(f"""
        s_add_u32 s53, {s(S_TB)}, {t}
        s_lshl_b32 s53, s53, 1
        v_add_u32 v8, s53, v6
        v_xor_b32 v9, v8, v4
        v_and_b32 v9, 7, v9
        v_and_b32 v8, 24, v8
        v_or_b32 v8, v8, v9
        v_lshl_add_u32 {v(V_WR + t)}, v8, 4, v5
        """)
    A(f"""
    v_and_b32 v2, 31, {v(L)}
    s_lshl_b32 s53, {s(S_SH)}, 6
    v_add_u32 v3, s53, v2
    v_lshlrev_b32 v3, 7, v3
    v_add_u32 v3, {XBASE}, v3
    v_bfe_u32 v4, {v(L)}, 1, 3
    v_lshrrev_b32 v5, 5, {v(L)}
    """)
    for k in range(4):
        A(f"""
        v_add_u32 v6, {2 * k}, v5
        v_xor_b32 v6, v6, v4
        v_lshl_add_u32 {v(V_XR + k)}, v6, 4, v3
        """)
    for r in range(V_ACC, V_ACC + 96):
        A(f"v_mov_b32 {v(r)}, 0")
    for t in range(3):
        A(f"v_mov_b32 {v(V_CS + t)}, 0")
    A(f"""
    s_mov_b32 {s(S_IT)}, 0
    s_mov_b32 {s(S_WPAIR)}, 0
    s_mov_b32 {s(S_WDELTA)}, {2 * WSLOT}
    s_mov_b32 {s(S_XCUR)}, 0
    s_mov_b32 {s(S_XPREV)}, {2 * XSLOT}
    s_mov_b32 {s(S_XG)}, 2
    s_add_u32 {s(S_XD)}, {s(S_XSO)}, {2 * 128}
    s_waitcnt vmcnt(12)
    s_barrier
    """)
    Prof.stamp(A, 2); Prof.stamp(A, 8, real=True)

def first_reads(A, b):
    for txt, regs in reads_for(b, 0, 0, 0):
        A(txt)

V_M = 2
V_RS = 6
V_CSV = 16
V_TMP = 32
LOG2E = 0x3fb8aa3b
EPS6 = 0x358637bd

def epi_common(A, csmode):
    L = V_L
    Prof.stamp(A, 3); Prof.stamp(A, 9, real=True)
    A("s_waitcnt vmcnt(0) lgkmcnt(0)")
    for t in range(3):
        A(f"v_mov_b32 v8, {v(V_CS + t)}")
        A(f"v_mov_b32 v9, {v(V_CS + t)}")
        A("s_nop 1")
        A("v_permlane32_swap_b32 v8, v9")
        A("s_nop 1")
        A(f"v_add_f32 {v(V_CS + t)}, v8, v9")
    A(f"""
    v_and_b32 v8, 31, {v(L)}
    v_lshlrev_b32 v8, 2, v8
    s_mul_i32 s53, {s(S_W)}, 384
    s_add_u32 s53, s53, {CSB}
    v_add_u32 v8, s53, v8
    """)
    for t in range(3):
        A(f"ds_write_b32 v8, {v(V_CS + t)} offset:{128 * t}")
    lab = A.uid("L_poll"); done = A.uid("L_polled")
    A(f"""
    s_cmp_lg_u32 {s(S_W)}, 0
    s_cbranch_scc1 {done}
    s_lshl_b32 s53, {s(S_RB)}, 2
    v_mov_b32 v9, s53
    {lab}:
    global_load_dword v10, v9, s[16:17] sc1
    s_waitcnt vmcnt(0)
    v_readfirstlane_b32 s53, v10
    s_nop 1
    s_cmp_ge_u32 s53, 8
    s_cbranch_scc1 {done}
    s_sleep 2
    s_branch {lab}
    {done}:
    s_waitcnt lgkmcnt(0)
    s_barrier
    """)
    Prof.stamp(A, 4)
    A(f"""
    v_and_b32 v8, 31, {v(L)}
    s_lshl_b32 s53, {s(S_RB)}, 7
    s_lshl_b32 s54, {s(S_SH)}, 6
    s_add_u32 s53, s53, s54
    v_add_u32 v8, s53, v8
    v_lshlrev_b32 v8, 3, v8
    v_add_u32 v8, {STAT}, v8
    buffer_load_dwordx2 v[2:3], v8, s[12:15], 0 offen sc1
    buffer_load_dwordx2 v[4:5], v8, s[12:15], 0 offen offset:256 sc1
    """)
    A(f"""
    v_lshrrev_b32 v10, 5, {v(L)}
    v_lshlrev_b32 v10, 4, v10
    s_mul_i32 s53, {s(S_W)}, 384
    s_add_u32 s53, s53, {CSB}
    v_add_u32 v10, s53, v10
    """)
    if csmode == "split":
        A(f"""
        s_xor_b32 s54, {s(S_W)}, 1
        s_mul_i32 s54, s54, 384
        s_add_u32 s54, s54, {CSB}
        v_lshrrev_b32 v11, 5, {v(L)}
        v_lshlrev_b32 v11, 4, v11
        v_add_u32 v11, s54, v11
        """)
    A("s_waitcnt vmcnt(0)")
    A("v_sub_f32 v2, 0, v2\nv_sub_f32 v4, 0, v4")

def load_cs(A, t, csmode):
    for j in range(4):
        A(f"ds_read_b128 {v(V_CSV + 4 * j, 4)}, v10 offset:{128 * t + 32 * j}")
    if csmode == "split":
        for j in range(4):
            A(f"ds_read_b128 {v(V_TMP + 4 * j, 4)}, v11 offset:{128 * t + 32 * j}")
        A("s_waitcnt lgkmcnt(0)")
        for j in range(8):
            A(f"v_pk_add_f32 {v(V_CSV + 2 * j, 2)}, {v(V_CSV + 2 * j, 2)}, {v(V_TMP + 2 * j, 2)}")
    else:
        A("s_waitcnt lgkmcnt(0)")

def center(A, T, t):
    m = 2 + 2 * T
    for q in range(8):
        r = acc(T, t) + 2 * q
        A(f"v_pk_fma_f32 {v(r, 2)}, {v(V_CSV + 2 * q, 2)}, {v(m, 2)}, {v(r, 2)} op_sel_hi:[1,0,1]")

def epi_gu(A, csmode):
    L = V_L
    A("v_mul_f32 v6, v3, v3\nv_mul_f32 v8, v5, v5")
    A(f"""
    v_bfe_u32 v12, {v(L)}, 4, 1
    v_lshlrev_b32 v12, 10, v12
    v_lshrrev_b32 v13, 5, {v(L)}
    v_lshl_add_u32 v12, v13, 8, v12
    v_and_b32 v13, 15, {v(L)}
    v_lshl_add_u32 v12, v13, 4, v12
    s_lshl_b32 s55, {s(S_RB)}, 1
    s_add_u32 s55, s55, {s(S_SH)}
    s_mul_i32 s55, s55, 54
    s_mul_i32 s56, {s(S_C)}, 12
    s_add_u32 s56, s56, {s(S_TB)}
    """)
    for t in range(3):
        load_cs(A, t, csmode)
        A(f"""
        s_add_u32 s57, s56, {t}
        s_lshr_b32 s58, s57, 1
        s_add_u32 s58, s58, s55
        s_lshl_b32 s58, s58, 12
        s_and_b32 s57, s57, 1
        s_lshl_b32 s57, s57, 9
        s_add_u32 s58, s58, s57
        """)
        for T in range(2):
            center(A, T, t)
            r = acc(T, t)
            rs = 6 + 2 * T
            for q in range(4):
                A(f"v_pk_mul_f32 {v(r + 2 * q, 2)}, {v(r + 2 * q, 2)}, {v(r + 8 + 2 * q, 2)}")
            for q in range(4):
                A(f"v_pk_mul_f32 {v(r + 2 * q, 2)}, {v(r + 2 * q, 2)}, {v(rs, 2)} op_sel_hi:[1,0]")
            for q in range(4):
                A(f"v_cvt_pk_bf16_f32 {v(r + 8 + q)}, {v(r + 2 * q)}, {v(r + 2 * q + 1)}")
            A(f"buffer_store_dwordx4 {v(r + 8, 4)}, v12, s[12:15], s58 offen offset:{2048 * T}")

def phi8(A, r, T, n, tmp):
    rs = 3 + 2 * T
    rl = 6 + 2 * T
    rr = 10
    for q in range(n // 2):
        A(f"v_pk_mul_f32 {v(tmp + 2 * q, 2)}, {v(r + 2 * q, 2)}, {v(rl, 2)} op_sel_hi:[1,0]")
    for q in range(n):
        A(f"v_max_f32 {v(r + q)}, 0, {v(r + q)}")
    for q in range(n):
        A(f"v_exp_f32 {v(tmp + q)}, {v(tmp + q)} clamp")
    for q in range(n):
        A(f"v_fma_f32 {v(r + q)}, {v(r + q)}, {v(rs)}, v14")
    for q in range(n // 2):
        A(f"v_pk_add_f32 {v(r + 2 * q, 2)}, {v(r + 2 * q, 2)}, {v(tmp + 2 * q, 2)}")

def epi_q(A, csmode, b):
    L = V_L
    A(f"v_mul_f32 v6, {hex(LOG2E)}, v3\nv_mul_f32 v8, {hex(LOG2E)}, v5\nv_mov_b32 v14, {hex(EPS6)}")
    A(f"""
    v_bfe_u32 v12, {v(L)}, 4, 1
    v_lshlrev_b32 v12, 10, v12
    v_and_b32 v13, 15, {v(L)}
    v_lshl_add_u32 v12, v13, 4, v12
    v_lshrrev_b32 v13, 5, {v(L)}
    s_lshl_b32 s55, {s(S_RB)}, 1
    s_add_u32 s55, s55, {s(S_SH)}
    s_mul_i32 s55, s55, 20
    s_mul_i32 s56, {s(S_C)}, 10
    s_add_u32 s55, s55, s56
    s_lshl_b32 s55, s55, 12
    s_add_u32 s55, s55, {PQF}
    s_add_u32 s56, s55, {5 * 4096}
    """)
    for t in range(b):
        load_cs(A, t, csmode)
        A(f"""
        s_add_u32 s57, {s(S_TB)}, {t}
        s_lshl_b32 s57, s57, 1
        v_add_u32 v15, s57, v13
        v_mul_u32_u24 v64, 52, v15
        v_lshrrev_b32 v64, 8, v64
        v_mul_u32_u24 v65, 5, v64
        v_sub_u32 v15, v15, v65
        v_lshlrev_b32 v15, 12, v15
        v_lshl_add_u32 v15, v64, 8, v15
        v_add_u32 v15, v15, v12
        """)
        for T in range(2):
            center(A, T, t)
            r = acc(T, t)
            phi8(A, r, T, 16, V_TMP)
            for q in range(8):
                A(f"v_cvt_pk_bf16_f32 {v(V_TMP + q)}, {v(r + 2 * q)}, {v(r + 2 * q + 1)}")
            A(f"buffer_store_dwordx4 {v(V_TMP, 4)}, v15, s[12:15], s55 offen offset:{2048 * T}")
            A(f"buffer_store_dwordx4 {v(V_TMP + 4, 4)}, v15, s[12:15], s56 offen offset:{2048 * T}")
            A("s_nop 1")

def epi_kv(A, csmode, b):
    L = V_L
    A(f"v_mul_f32 v6, {hex(LOG2E)}, v3\nv_mul_f32 v8, {hex(LOG2E)}, v5\nv_mov_b32 v14, {hex(EPS6)}")
    A(f"""
    v_and_b32 v12, 31, {v(L)}
    s_lshl_b32 s55, {s(S_SH)}, 6
    v_add_u32 v12, s55, v12
    v_mul_u32_u24 v12, 320, v12
    v_lshrrev_b32 v13, 5, {v(L)}
    v_lshl_add_u32 v12, v13, 4, v12
    s_lshl_b32 s55, {s(S_TB)}, 5
    v_add_u32 v12, s55, v12
    """)
    for t in range(b):
        load_cs(A, t, csmode)
        for T in range(2):
            center(A, T, t)
            r = acc(T, t)
            phi8(A, r, T, 8, V_TMP)
            rsp = 2 + 2 * T
            for q in range(4):
                A(f"v_pk_mul_f32 {v(r + 8 + 2 * q, 2)}, {v(r + 8 + 2 * q, 2)}, {v(rsp, 2)} op_sel:[0,1] op_sel_hi:[1,1]")
            for q in range(8):
                A(f"v_cvt_pk_bf16_f32 {v(V_TMP + q)}, {v(r + 2 * q)}, {v(r + 2 * q + 1)}")
            A(f"ds_write_b128 v12, {v(V_TMP, 4)} offset:{T * 32 * 320 + 32 * t}")
            A(f"ds_write_b128 v12, {v(V_TMP + 4, 4)} offset:{40960 + T * 32 * 320 + 32 * t}")

def epi_kv_tail(A):
    L = V_L
    A("s_waitcnt lgkmcnt(0)\ns_barrier")
    A(f"""
    v_lshrrev_b32 v2, 5, {v(L)}
    v_bfe_u32 v3, {v(L)}, 2, 2
    v_lshl_add_u32 v2, v2, 3, v3
    v_mul_u32_u24 v2, 320, v2
    v_bfe_u32 v3, {v(L)}, 4, 1
    v_lshl_add_u32 v2, v3, 5, v2
    v_and_b32 v3, 3, {v(L)}
    v_lshl_add_u32 v2, v3, 3, v2
    s_mul_i32 s55, {s(S_W)}, 40
    v_add_u32 v2, s55, v2
    v_mov_b32 v4, {s(S_ONES)}
    v_mov_b32 v5, {s(S_ONES)}
    v_mov_b32 v6, {s(S_ONES)}
    v_mov_b32 v7, {s(S_ONES)}
    v_add_u32 v8, 40960, v2
    """)
    D1, D2 = 160, 176
    for r in range(32):
        A(f"v_mov_b32 {v(D1 + r)}, 0")
    for st in range(8):
        base = 32 + 8 * st
        for p in range(2):
            A(f"ds_read_b64_tr_b16 {v(base + 2 * p, 2)}, v2 offset:{(16 * st + 4 * p) * 320}")
        for p in range(2):
            A(f"ds_read_b64_tr_b16 {v(base + 4 + 2 * p, 2)}, v8 offset:{(16 * st + 4 * p) * 320}")
    for st in range(8):
        base = 32 + 8 * st
        A(f"s_waitcnt lgkmcnt({min(15, 4 * (7 - st))})")
        A(f"v_mfma_f32_32x32x16_bf16 {v(D1, 16)}, {v(base, 4)}, {v(base + 4, 4)}, {v(D1, 16)}")
        A(f"v_mfma_f32_32x32x16_bf16 {v(D2, 16)}, {v(base, 4)}, {v(4, 4)}, {v(D2, 16)}")
    A(f"""
    v_and_b32 v8, 31, {v(L)}
    v_lshrrev_b32 v9, 5, {v(L)}
    v_mul_u32_u24 v10, 80, v8
    s_lshl_b32 s55, {s(S_C)}, 3
    s_add_u32 s55, s55, {s(S_W)}
    s_mul_i32 s54, s55, 80
    s_lshl_b32 s55, s55, 4
    s_add_u32 s55, s55, {s(S_RB)}
    s_mul_i32 s55, s55, {KVP_BLK}
    s_add_u32 s55, s55, {KVP}
    s_mul_i32 s53, {s(S_RB)}, 2560
    s_add_u32 s54, s54, s53
    s_add_u32 s54, s54, {ZP}
    v_add_u32 v10, s55, v10
    v_mov_b32 v11, s54
    v_cmp_eq_u32 vcc, 20, v8
    s_nop 1
    v_cndmask_b32 v10, v10, v11, vcc
    v_lshl_add_u32 v10, v9, 4, v10
    s_nop 4
    """)
    for r in range(12):
        A(f"v_cndmask_b32 {v(D1 + r)}, {v(D1 + r)}, {v(D2 + r)}, vcc")
    A(f"""
    v_cmp_ge_u32 vcc, 20, v8
    s_and_saveexec_b64 s[56:57], vcc
    buffer_store_dwordx4 {v(D1, 4)}, v10, s[12:15], 0 offen
    buffer_store_dwordx4 {v(D1 + 4, 4)}, v10, s[12:15], 0 offen offset:32
    v_cmp_eq_u32 vcc, 0, v9
    s_and_b64 exec, exec, vcc
    buffer_store_dwordx4 {v(D1 + 8, 4)}, v10, s[12:15], 0 offen offset:64
    s_mov_b64 exec, s[56:57]
    """)

def side(A):
    L = V_L
    J = 18
    A(f"""
    s_and_b32 s32, s2, 1
    s_lshl_b32 s32, s32, 3
    s_lshr_b32 s33, s2, 3
    s_add_u32 {s(J)}, s32, s33
    s_mov_b32 s8, s36
    s_mov_b32 s9, s37
    s_mov_b32 s10, {X_BYTES}
    s_mov_b32 s11, 0x20000
    s_load_dwordx2 s[60:61], s[0:1], 16
    s_load_dwordx2 s[62:63], s[0:1], 48
    """)
    A(f"""
    v_lshrrev_b32 v2, 4, {v(L)}
    s_lshl_b32 s32, {s(J)}, 7
    s_lshl_b32 s33, {s(S_W)}, 4
    s_add_u32 s32, s32, s33
    v_add_u32 v2, s32, v2
    v_mul_u32_u24 v3, 1280, v2
    v_and_b32 v4, 15, {v(L)}
    v_lshl_add_u32 v3, v4, 4, v3
    s_mov_b32 {s(S_ONES)}, 0x3f803f80
    """)
    for g in range(4):
        for i in range(5):
            A(f"buffer_load_dwordx4 {v(32 + 20 * g + 4 * i, 4)}, v3, s[8:11], 0 offen offset:{256 * i}")
        if g < 3: A(f"v_add_u32 v3, {4 * 1280}, v3")
    for g in range(4):
        A(f"s_waitcnt vmcnt({15 - 5 * g})")
        S1, S2 = 8 + 2 * g, 9 + 2 * g
        A(f"v_mov_b32 {v(S1)}, 0\nv_mov_b32 {v(S2)}, 0")
        for i in range(20):
            r = 32 + 20 * g + i
            A(f"v_dot2c_f32_bf16 {v(S1)}, {s(S_ONES)}, {v(r)}")
            A(f"v_dot2c_f32_bf16 {v(S2)}, {v(r)}, {v(r)}")
    for sh in (8, 4, 2, 1):
        A("s_nop 1")
        for r in range(8, 16):
            A(f"v_add_f32_dpp {v(r)}, {v(r)}, {v(r)} row_ror:{sh} row_mask:0xf bank_mask:0xf")
    A("s_mov_b32 s34, 0x3acccccd\ns_mov_b32 s35, 0x3727c5ac")
    for g in range(4):
        S1, S2 = 8 + 2 * g, 9 + 2 * g
        A(f"""
        v_mul_f32 {v(S1)}, s34, {v(S1)}
        v_mul_f32 {v(S2)}, s34, {v(S2)}
        v_fma_f32 {v(S2)}, -{v(S1)}, {v(S1)}, {v(S2)}
        v_max_f32 {v(S2)}, 0, {v(S2)}
        v_cvt_pk_bf16_f32 v20, {v(S1)}, {v(S2)}
        v_lshlrev_b32 {v(S1)}, 16, v20
        v_and_b32 {v(S2)}, 0xffff0000, v20
        v_add_f32 {v(S2)}, s35, {v(S2)}
        v_cvt_pk_bf16_f32 v20, {v(S2)}, {v(S2)}
        v_lshlrev_b32 v20, 16, v20
        v_sqrt_f32 v20, v20
        s_nop 0
        v_cvt_pk_bf16_f32 v20, v20, v20
        v_lshlrev_b32 v20, 16, v20
        v_rcp_f32 {v(S2)}, v20
        """)
    A(f"""
    v_lshlrev_b32 v2, 3, v2
    v_add_u32 v2, {STAT}, v2
    v_and_b32 v4, 15, {v(L)}
    v_cmp_eq_u32 vcc, 0, v4
    s_and_saveexec_b64 s[56:57], vcc
    """)
    for g in range(4):
        A(f"buffer_store_dwordx2 {v(8 + 2 * g, 2)}, v2, s[12:15], 0 offen offset:{32 * g} sc1")
    A(f"""
    s_waitcnt vmcnt(0)
    v_cmp_eq_u32 vcc, 0, {v(L)}
    s_and_b64 exec, exec, vcc
    s_lshl_b32 s32, {s(J)}, 2
    v_mov_b32 v5, s32
    v_mov_b32 v6, 1
    global_atomic_add v5, v6, s[16:17] sc1
    s_mov_b64 exec, s[56:57]
    """)
    Prof.stamp(A, 2)
    A(f"""
    s_waitcnt lgkmcnt(0)
    s_mov_b32 s4, s62
    s_mov_b32 s5, s63
    s_mov_b32 s6, {WD_BYTES}
    s_mov_b32 s7, 0x20000
    s_mov_b32 s8, s60
    s_mov_b32 s9, s61
    s_mov_b32 s10, {WO_BYTES}
    """)
    for i in range(5):
        A(f"""
        s_mul_i32 s32, {s(S_W)}, 320
        s_add_u32 s32, s32, {64 * i}
        v_add_u32 v2, s32, {v(L)}
        v_mul_u32_u24 v3, 3277, v2
        v_lshrrev_b32 v3, 18, v3
        v_mul_u32_u24 v4, 80, v3
        v_sub_u32 v4, v2, v4
        v_and_b32 v5, 3, v3
        v_lshlrev_b32 v5, 1, v5
        v_xor_b32 v5, v5, v4
        v_and_b32 v5, 7, v5
        v_and_b32 v4, 0x78, v4
        v_or_b32 v4, v4, v5
        v_mul_u32_u24 v3, 1280, v3
        v_lshl_add_u32 {v(20 + i)}, v4, 4, v3
        """)
    A(f"""
    v_lshrrev_b32 v2, 4, {v(L)}
    v_bfe_u32 v3, {v(L)}, 2, 2
    v_lshl_add_u32 v4, v2, 3, v3
    v_mul_u32_u24 v4, 1280, v4
    v_and_b32 v5, 1, {v(L)}
    v_lshl_add_u32 v4, v5, 3, v4
    v_bfe_u32 v5, {v(L)}, 1, 1
    v_lshlrev_b32 v3, 1, v3
    """)
    for n in range(5):
        A(f"""
        s_mul_i32 s32, {s(S_W)}, 10
        s_add_u32 s32, s32, {2 * n}
        v_add_u32 v6, s32, v5
        v_xor_b32 v7, v6, v3
        v_and_b32 v7, 7, v7
        v_and_b32 v6, 0x78, v6
        v_or_b32 v6, v6, v7
        v_lshl_add_u32 {v(26 + n)}, v6, 4, v4
        """)
    A(f"v_lshlrev_b32 v31, 4, {v(L)}\nv_lshrrev_b32 v2, 4, {v(L)}")
    A("v_cmp_gt_u32 s[64:65], 3, v2\nv_cmp_gt_u32 s[66:67], 2, v2")
    A("s_mov_b32 s33, 0")
    A.label("L_side_job")
    A(f"""
    s_cmp_lt_u32 s33, 4
    s_cbranch_scc0 L_side_wo
    s_lshl_b32 s34, s33, 4
    s_add_u32 s34, s34, {s(J)}
    s_cmp_lt_u32 s34, 54
    s_cbranch_scc0 L_side_next
    s_mul_i32 s35, s34, {32 * 1280}
    s_lshl_b32 s53, {s(S_W)}, 2
    s_add_u32 s53, s53, {s(S_W)}
    s_lshl_b32 s53, s53, 10
    s_mov_b32 m0, s53
    s_nop 0
    """)
    for i in range(5):
        A(f"buffer_load_dwordx4 {v(20 + i)}, s[4:7], s35 offen lds")
        if i < 4: A("s_add_u32 s53, s53, 1024\ns_mov_b32 m0, s53\ns_nop 0")
    A(f"""
    s_mul_i32 s54, {s(S_W)}, 54
    s_add_u32 s54, s54, s34
    s_mul_i32 s54, s54, 5120
    s_add_u32 s54, s54, {WDF}
    s_mov_b32 s55, 0
    s_branch L_side_tr
    L_side_wo:
    s_lshl_b32 s34, {s(J)}, 1
    s_add_u32 s34, s34, s33
    s_sub_u32 s34, s34, 4
    s_mul_i32 s35, s34, {20 * 1280}
    s_lshl_b32 s53, {s(S_W)}, 2
    s_add_u32 s53, s53, {s(S_W)}
    s_lshl_b32 s53, s53, 10
    s_mov_b32 m0, s53
    s_nop 0
    """)
    for i in range(5):
        A(f"buffer_load_dwordx4 {v(20 + i)}, s[8:11], s35 offen lds")
        if i < 4: A("s_add_u32 s53, s53, 1024\ns_mov_b32 m0, s53\ns_nop 0")
    A(f"""
    s_lshl_b32 s54, s34, 3
    s_add_u32 s54, s54, {s(S_W)}
    s_mul_i32 s54, s54, 5120
    s_add_u32 s54, s54, {WOF}
    s_mov_b32 s55, 1
    L_side_tr:
    s_waitcnt vmcnt(0)
    s_barrier
    """)
    for n in range(5):
        for p in range(2):
            A(f"ds_read_b64_tr_b16 {v(32 + 4 * n + 2 * p, 2)}, {v(26 + n)} offset:{4 * p * 1280}")
    A("s_waitcnt lgkmcnt(0)\ns_cmp_eq_u32 s55, 0\ns_cbranch_scc1 L_side_store")
    for n in range(5):
        for q in range(4):
            m = "s[64:65]" if q < 2 else "s[66:67]"
            A(f"v_cndmask_b32 {v(32 + 4 * n + q)}, 0, {v(32 + 4 * n + q)}, {m}")
    A.label("L_side_store")
    for n in range(5):
        A(f"buffer_store_dwordx4 {v(32 + 4 * n, 4)}, v31, s[12:15], s54 offen offset:0" if n == 0 else
          f"s_add_u32 s54, s54, 1024\nbuffer_store_dwordx4 {v(32 + 4 * n, 4)}, v31, s[12:15], s54 offen")
    A("s_barrier")
    A.label("L_side_next")
    A("s_add_u32 s33, s33, 1\ns_cmp_lt_u32 s33, 6\ns_cbranch_scc1 L_side_job")

def gen_k1(A, csmode="full"):
    A(f".globl {KN}\n.p2align 8\n.type {KN},@function\n{KN}:")
    A(f"""
    s_cmp_ge_u32 s2, 256
    s_cbranch_scc1 L_k1_end
    """)
    Prof.stamp(A, 0, real=True); Prof.stamp(A, 1)
    A(f"""
    s_load_dwordx4 s[36:39], s[0:1], 0
    s_load_dwordx4 s[40:43], s[0:1], 32
    s_load_dwordx4 s[44:47], s[0:1], 64
    v_and_b32 {v(V_L)}, 63, v0
    v_lshrrev_b32 v2, 6, v0
    s_nop 0
    v_readfirstlane_b32 {s(S_W)}, v2
    s_waitcnt lgkmcnt(0)
    s_mov_b32 s12, s46
    s_mov_b32 s13, s47
    s_mov_b32 s14, {WS_USED}
    s_mov_b32 s15, 0x20000
    s_mov_b32 s16, s44
    s_mov_b32 s17, s45
    s_and_b32 s32, s2, 6
    s_cmp_eq_u32 s32, 6
    s_cbranch_scc0 L_k1_main
    s_cmp_lt_u32 s2, 64
    s_cbranch_scc1 L_k1_side
    L_k1_main:
    """)
    setup_main(A)
    A(f"""
    s_cmp_lg_u32 {s(S_TYPE)}, 0
    s_cselect_b32 s53, 1, 0
    s_lshr_b32 s54, {s(S_W)}, 2
    s_and_b32 s53, s53, s54
    s_cmp_eq_u32 s53, 1
    s_cbranch_scc1 L_k1_b2
    """)
    first_reads(A, 3)
    main_loop(A, 3, csmode)
    epi_common(A, csmode)
    A(f"s_cmp_eq_u32 {s(S_TYPE)}, 1\ns_cbranch_scc1 L_k1_q3\ns_cmp_eq_u32 {s(S_TYPE)}, 2\ns_cbranch_scc1 L_k1_kv3")
    def end():
        Prof.flush(A, 10, s(S_W), 6); A("s_endpgm")
    epi_gu(A, csmode)
    end()
    A.label("L_k1_q3"); epi_q(A, csmode, 3); end()
    A.label("L_k1_kv3"); epi_kv(A, csmode, 3); A("s_branch L_k1_kvtail")
    A.label("L_k1_b2")
    first_reads(A, 2)
    main_loop(A, 2, csmode)
    epi_common(A, csmode)
    A(f"s_cmp_eq_u32 {s(S_TYPE)}, 2\ns_cbranch_scc1 L_k1_kv2")
    epi_q(A, csmode, 2); end()
    A.label("L_k1_kv2"); epi_kv(A, csmode, 2)
    A.label("L_k1_kvtail"); Prof.stamp(A, 5); epi_kv_tail(A); end()
    A.label("L_k1_side"); side(A); end()
    A.label("L_k1_end")
    A("s_endpgm")
```

```python
from asmlib import Asm, v, a, s, Prof
from common import *

KN = "k2_kernel"
THREADS = 256
VGPRS = 512
ACCUM = 256
RED = 0
ZL = 61440
IMG = ZL + 2048
LDS_BYTES = IMG + 2048

S_W = 3; S_RB = 18; S_NB = 19; S_H = 20; S_WD = 21; S_CNT = 22; S_REM = 23; S_T1 = 24; S_T2 = 25; S_BIG = 26
V_L = 1; V_A = 2; V_B = 3
V_X = 20
PQ = 32; ACC = 112; TMP = 192
NSLOT = 6
def pq(k, T): return PQ + (k * 4 + T) * 4
def acc(T, nt): return ACC + (T * 5 + nt) * 4
def hb(p, T): return 36 * p + 4 * T
def wa(p, nt): return 36 * p + 16 + 4 * nt

def ld5(dst, sreg, srd="s[12:15]", extra=""):
    L = []
    for nt in range(5):
        if nt < 4: L.append(f"buffer_load_dwordx4 {dst(nt)}, {v(V_A)}, {srd}, {sreg} offen offset:{1024 * nt}{extra}")
        else: L.append(f"buffer_load_dwordx4 {dst(nt)}, {v(V_B)}, {srd}, {sreg} offen{extra}")
    return L

def stage_loads(p):
    L = ld5(lambda nt: a(wa(p, nt), 4), s(S_T2))
    for T in range(4):
        L.append(f"buffer_load_dwordx4 {a(hb(p, T), 4)}, {v(V_A)}, s[12:15], {s(S_T1)} offen offset:{1024 * T}")
    return L

def stage_ptrs(A):
    A(f"""
    s_cmp_gt_i32 {s(S_REM)}, 0
    s_cselect_b32 {s(S_T1)}, {s(S_H)}, {s(S_BIG)}
    s_cselect_b32 {s(S_T2)}, {s(S_WD)}, {s(S_BIG)}
    s_add_u32 {s(S_H)}, {s(S_H)}, 4096
    s_add_u32 {s(S_WD)}, {s(S_WD)}, 5120
    s_sub_u32 {s(S_REM)}, {s(S_REM)}, 1
    """)

def issue_stage(A, p):
    stage_ptrs(A)
    for x in stage_loads(p): A(x)

def gen_k2(A):
    L = V_L
    A(f".globl {KN}\n.p2align 8\n.type {KN},@function\n{KN}:")
    A("s_cmp_ge_u32 s2, 256\ns_cbranch_scc1 L_k2_end")
    Prof.stamp(A, 0, real=True); Prof.stamp(A, 1)
    A(f"""
    s_load_dwordx2 s[36:37], s[0:1], 0
    s_load_dwordx2 s[38:39], s[0:1], 56
    s_load_dwordx4 s[44:47], s[0:1], 64
    v_and_b32 {v(L)}, 63, v0
    v_lshrrev_b32 v4, 6, v0
    v_lshlrev_b32 {v(V_A)}, 4, {v(L)}
    v_readfirstlane_b32 {s(S_W)}, v4
    v_add_u32 {v(V_B)}, 4096, {v(V_A)}
    s_and_b32 s32, s2, 7
    s_lshr_b32 s33, s2, 3
    s_and_b32 s34, s32, 1
    s_lshl_b32 {s(S_RB)}, s34, 4
    s_bfe_u32 s34, s32, 0x10001
    s_lshl_b32 s34, s34, 3
    s_add_u32 {s(S_RB)}, {s(S_RB)}, s34
    s_and_b32 s34, s33, 7
    s_add_u32 {s(S_RB)}, {s(S_RB)}, s34
    s_lshr_b32 s34, s32, 2
    s_lshl_b32 {s(S_NB)}, s34, 2
    s_lshr_b32 s34, s33, 3
    s_add_u32 {s(S_NB)}, {s(S_NB)}, s34
    s_mov_b32 {s(S_BIG)}, 0x7f000000
    s_mul_i32 s34, {s(S_W)}, 14
    s_mul_i32 {s(S_H)}, {s(S_RB)}, 54
    s_add_u32 {s(S_H)}, {s(S_H)}, s34
    s_lshl_b32 {s(S_H)}, {s(S_H)}, 12
    s_mul_i32 {s(S_WD)}, {s(S_NB)}, 54
    s_add_u32 {s(S_WD)}, {s(S_WD)}, s34
    s_mul_i32 {s(S_WD)}, {s(S_WD)}, 5120
    s_add_u32 {s(S_WD)}, {s(S_WD)}, {WDF}
    s_cmp_eq_u32 {s(S_W)}, 3
    s_cselect_b32 {s(S_CNT)}, 12, 14
    s_mov_b32 {s(S_REM)}, {s(S_CNT)}
    s_waitcnt lgkmcnt(0)
    s_mov_b32 s12, s46
    s_mov_b32 s13, s47
    s_mov_b32 s14, {WS_USED}
    s_mov_b32 s15, 0x20000
    s_mov_b32 s16, s44
    s_mov_b32 s17, s45
    s_mov_b32 s8, s36
    s_mov_b32 s9, s37
    s_mov_b32 s10, {X_BYTES}
    s_mov_b32 s11, 0x20000
    s_mov_b32 s4, s38
    s_mov_b32 s5, s39
    s_mov_b32 s6, {X_BYTES}
    s_mov_b32 s7, 0x20000
    s_cmp_eq_u32 {s(S_W)}, 3
    s_cbranch_scc0 L_k2_z
    """)
    KV0 = 32; WO = 160
    A(f"""
    s_lshr_b32 s40, s2, 3
    s_and_b32 s41, s2, 7
    s_mul_i32 s42, s40, {16 * KVP_BLK}
    s_add_u32 s42, s42, {KVP}
    v_add_u32 v4, 1024, {v(V_A)}
    """)
    for rb in range(16):
        A(f"buffer_load_dwordx4 {v(KV0 + 8 * rb, 4)}, {v(V_A)}, s[12:15], s42 offen")
        A(f"buffer_load_dwordx4 {v(KV0 + 8 * rb + 4, 4)}, v4, s[12:15], s42 offen")
        if rb < 15: A(f"s_add_u32 s42, s42, {KVP_BLK}")
    A(f"""
    s_lshl_b32 s42, s40, 3
    s_add_u32 s42, s42, s41
    s_mul_i32 s42, s42, 5120
    s_add_u32 s42, s42, {WOF}
    """)
    for x in ld5(lambda nt: v(WO + 4 * nt, 4), "s42"): A(x)
    A.label("L_k2_z")
    A(f"""
    v_cmp_gt_u32 vcc, 40, {v(L)}
    v_mov_b32 v5, {s(S_BIG)}
    s_mul_i32 s34, {s(S_W)}, 640
    s_add_u32 s34, s34, {ZP}
    v_cndmask_b32 v5, v5, {v(V_A)}, vcc
    """)
    for rb in range(16):
        A(f"buffer_load_dwordx4 {v(TMP + 4 * rb, 4)}, v5, s[12:15], s34 offen")
        if rb < 15: A("s_add_u32 s34, s34, 2560")
    A(f"s_cmp_eq_u32 {s(S_W)}, 3\ns_cbranch_scc0 L_k2_pq")
    A(f"""
    v_mov_b32 v8, 0
    v_mov_b32 v9, 0
    v_mov_b32 v10, 0
    v_mov_b32 v11, 0
    v_lshlrev_b32 v6, 5, {v(L)}
    v_add_u32 v6, {IMG}, v6
    ds_write_b128 v6, v[8:11]
    ds_write_b128 v6, v[8:11] offset:16
    """)
    for h in range(2):
        A(f"""
        v_add_u32 v6, {64 * h}, {v(L)}
        v_mul_u32_u24 v7, 205, v6
        v_lshrrev_b32 v7, 10, v7
        v_mul_u32_u24 v12, 5, v7
        v_sub_u32 v6, v6, v12
        v_lshlrev_b32 v6, 3, v6
        v_lshl_add_u32 v6, v7, 6, v6
        v_add_u32 {v(14 + h)}, {IMG}, v6
        """)
    A(f"""
    v_lshrrev_b32 v6, 4, {v(L)}
    v_bfe_u32 v7, {v(L)}, 2, 2
    v_lshl_add_u32 v6, v6, 3, v7
    v_lshlrev_b32 v6, 6, v6
    v_and_b32 v7, 3, {v(L)}
    v_lshl_add_u32 v6, v7, 3, v6
    v_add_u32 v16, {IMG}, v6
    s_waitcnt vmcnt(21)
    """)
    for step in (8, 4, 2, 1):
        for rb in range(step):
            for q in range(8):
                A(f"v_add_f32 {v(KV0 + 8 * rb + q)}, {v(KV0 + 8 * rb + q)}, {v(KV0 + 8 * (rb + step) + q)}")
    for q in range(4):
        A(f"v_cvt_pk_bf16_f32 {v(8 + q)}, {v(KV0 + 2 * q)}, {v(KV0 + 2 * q + 1)}")
    A(f"""
    ds_write_b64 v14, v[8:9]
    v_cmp_gt_u32 vcc, 36, {v(L)}
    s_and_saveexec_b64 s[56:57], vcc
    ds_write_b64 v15, v[10:11]
    s_mov_b64 exec, s[56:57]
    s_waitcnt lgkmcnt(0)
    """)
    for tile in range(2):
        for p in range(2):
            A(f"ds_read_b64_tr_b16 {v(32 + 4 * tile + 2 * p, 2)}, v16 offset:{256 * p + 32 * tile}")
    A(f"""
    s_lshr_b32 s49, s40, 3
    s_bfe_u32 s50, s40, 0x20001
    s_and_b32 s51, s40, 1
    s_mul_i32 s51, s51, 20
    s_mul_i32 s52, s41, 20
    s_mul_i32 s49, s49, 5
    s_add_u32 s52, s52, s49
    s_mul_i32 s52, s52, 5120
    s_lshl_b32 s50, s50, 8
    s_add_u32 s52, s52, s50
    s_add_u32 s52, s52, {MF}
    v_lshrrev_b32 v6, 4, {v(L)}
    v_lshl_add_u32 v6, v6, 2, s51
    v_and_b32 v7, 15, {v(L)}
    v_lshlrev_b32 v7, 4, v7
    v_lshrrev_b32 v12, 3, v6
    v_mul_u32_u24 v12, 5120, v12
    v_and_b32 v6, 7, v6
    v_lshl_add_u32 v12, v6, 1, v12
    v_add_u32 v17, v12, v7
    s_add_u32 s51, s51, 16
    s_lshr_b32 s53, s51, 3
    s_mul_i32 s53, s53, 5120
    s_and_b32 s51, s51, 7
    s_lshl_b32 s51, s51, 1
    s_add_u32 s53, s53, s51
    v_add_u32 v18, s53, v7
    v_mov_b32 v6, {s(S_BIG)}
    v_cmp_gt_u32 vcc, 16, {v(L)}
    s_waitcnt vmcnt(16) lgkmcnt(0)
    s_nop 0
    v_cndmask_b32 v18, v6, v18, vcc
    """)
    DM = 48
    for tile in range(2):
        for nt in range(5):
            A(f"v_mfma_f32_16x16x32_bf16 {v(DM + (tile * 5 + nt) * 4, 4)}, {v(32 + 4 * tile, 4)}, {v(WO + 4 * nt, 4)}, 0")
    A("s_nop 7")
    for tile in range(2):
        for nt in range(5):
            d = DM + (tile * 5 + nt) * 4
            A(f"v_cvt_pk_bf16_f32 {v(d)}, {v(d)}, {v(d + 1)}\nv_cvt_pk_bf16_f32 {v(d + 1)}, {v(d + 2)}, {v(d + 3)}")
    for tile in range(2):
        for nt in range(5):
            d = DM + (tile * 5 + nt) * 4
            if nt == 4: A("s_add_u32 s53, s52, 4096")
            so = "s52" if nt < 4 else "s53"
            off = f" offset:{1024 * nt}" if nt < 4 else ""
            A(f"buffer_store_dwordx2 {v(d, 2)}, {v(17 + tile)}, s[12:15], {so} offen{off} sc1")
    A(f"""
    s_waitcnt vmcnt(0)
    s_lshl_b32 s53, s41, 2
    v_mov_b32 v6, s53
    v_mov_b32 v7, 1
    s_mov_b64 exec, 1
    global_atomic_add v6, v7, s[16:17] sc1
    s_mov_b64 exec, -1
    """)
    A.label("L_k2_pq")
    Prof.stamp(A, 2)
    A(f"""
    s_mul_i32 s34, {s(S_RB)}, 20
    s_mul_i32 s35, {s(S_W)}, 5
    s_add_u32 s34, s34, s35
    s_lshl_b32 s34, s34, 12
    s_add_u32 s34, s34, {PQF}
    """)
    for k in range(5):
        for T in range(4):
            A(f"buffer_load_dwordx4 {v(pq(k, T), 4)}, {v(V_A)}, s[12:15], s34 offen offset:{1024 * T}")
        if k < 4: A("s_add_u32 s34, s34, 4096")
    for p in range(3): issue_stage(A, p)
    A(f"""
    v_lshlrev_b32 v6, 3, {v(L)}
    s_lshl_b32 s34, {s(S_W)}, 9
    s_add_u32 s34, s34, {ZL}
    v_add_u32 v6, s34, v6
    v_lshrrev_b32 v7, 4, {v(L)}
    v_mul_u32_u24 v8, 80, v7
    v_add_u32 v8, s34, v8
    s_waitcnt vmcnt(47)
    """)
    for step in (8, 4, 2, 1):
        for rb in range(step):
            for q in range(4):
                A(f"v_add_f32 {v(TMP + 4 * rb + q)}, {v(TMP + 4 * rb + q)}, {v(TMP + 4 * (rb + step) + q)}")
    A(f"""
    v_cvt_pk_bf16_f32 v10, {v(TMP)}, {v(TMP + 1)}
    v_cvt_pk_bf16_f32 v11, {v(TMP + 2)}, {v(TMP + 3)}
    ds_write_b64 v6, v[10:11]
    """)
    issue_stage(A, 3)
    A("s_waitcnt lgkmcnt(0)")
    ZF = TMP + 16
    for k in range(5):
        A(f"ds_read_b128 {v(ZF + 4 * k, 4)}, v8 offset:{16 * k}")
    A(f"""
    v_bfe_u32 v9, {v(L)}, 2, 2
    v_cmp_eq_u32 s[56:57], v9, v7
    v_and_b32 v9, 3, {v(L)}
    v_cmp_eq_u32 s[58:59], 0, v9
    v_cmp_eq_u32 s[60:61], 1, v9
    """)
    for r in range(ACC, ACC + 80):
        A(f"v_mov_b32 {v(r)}, 0")
    A(f"""
    s_and_b64 s[58:59], s[58:59], s[56:57]
    s_and_b64 s[60:61], s[60:61], s[56:57]
    s_waitcnt lgkmcnt(0)
    """)
    for k in range(5):
        for r in range(4):
            hh = 0 if k < 2 else (1 if k > 2 else (0 if r < 2 else 1))
            A(f"v_cndmask_b32 {v(ZF + 4 * k + r)}, 0, {v(ZF + 4 * k + r)}, {'s[58:59]' if hh == 0 else 's[60:61]'}")
    A("s_waitcnt vmcnt(36)")
    issue_stage(A, 4); issue_stage(A, 5)
    DEN = TMP + 40
    for k in range(5):
        for T in range(4):
            c = "0" if k == 0 else v(DEN + 4 * T, 4)
            A(f"v_mfma_f32_16x16x32_bf16 {v(DEN + 4 * T, 4)}, {v(ZF + 4 * k, 4)}, {v(pq(k, T), 4)}, {c}")
    A(f"s_mov_b32 s34, {hex(0x358637bd)}\ns_nop 6")
    for T in range(4):
        for hh in range(2):
            A(f"v_add_f32 {v(DEN + 4 * T + hh)}, s34, {v(DEN + 4 * T + hh)}")
    for T in range(4):
        for hh in range(2):
            A(f"v_rcp_f32 {v(DEN + 4 * T + hh)}, {v(DEN + 4 * T + hh)}")
    A("s_mov_b32 s35, 0xffff0000")
    TT = TMP
    for k in range(5):
        for T in range(4):
            r0 = pq(k, T)
            for r in range(4):
                A(f"v_lshlrev_b32 {v(TT + 2 * r)}, 16, {v(r0 + r)}\nv_and_b32 {v(TT + 2 * r + 1)}, s35, {v(r0 + r)}")
            for r in range(4):
                hh = 0 if k < 2 else (1 if k > 2 else (0 if r < 2 else 1))
                sel = "op_sel_hi:[1,0]" if hh == 0 else "op_sel:[0,1] op_sel_hi:[1,1]"
                A(f"v_pk_mul_f32 {v(TT + 2 * r, 2)}, {v(TT + 2 * r, 2)}, {v(DEN + 4 * T, 2)} {sel}")
            for r in range(4):
                A(f"v_cvt_pk_bf16_f32 {v(r0 + r)}, {v(TT + 2 * r)}, {v(TT + 2 * r + 1)}")
    Prof.stamp(A, 3)
    A.label("L_k2_loop")
    for p in range(NSLOT):
        A("s_waitcnt vmcnt(45)")
        stage_ptrs(A)
        ld = stage_loads(p)
        for nt in range(5):
            for T in range(4):
                A(f"v_mfma_f32_16x16x32_bf16 {v(acc(T, nt), 4)}, {a(wa(p, nt), 4)}, {a(hb(p, T), 4)}, {v(acc(T, nt), 4)}")
            A(ld[nt])
        for x in ld[5:]: A(x)
        A(f"s_sub_u32 {s(S_CNT)}, {s(S_CNT)}, 1")
        if p in (1, 5):
            A(f"s_cmp_eq_u32 {s(S_CNT)}, 0\ns_cbranch_scc1 L_k2_hdone")
    A("s_branch L_k2_loop")
    A.label("L_k2_hdone")
    Prof.stamp(A, 4)
    A(f"""
    v_and_b32 v6, 15, {v(L)}
    s_lshl_b32 s34, {s(S_RB)}, 6
    s_lshl_b32 s35, {s(S_W)}, 4
    s_add_u32 s34, s34, s35
    v_add_u32 v6, s34, v6
    v_mul_u32_u24 v6, 1280, v6
    v_lshrrev_b32 v7, 4, {v(L)}
    v_lshl_add_u32 v6, v7, 3, v6
    s_mul_i32 s34, {s(S_NB)}, 160
    v_add_u32 v30, s34, v6
    s_lshl_b32 s34, {s(S_NB)}, 2
    v_mov_b32 v9, s34
    s_waitcnt vmcnt(0)
    """)
    for nt in range(5):
        A(f"buffer_load_dwordx2 {v(V_X + 2 * nt, 2)}, v30, s[8:11], 0 offen offset:{32 * nt}")
    A(f"""
    L_k2_poll:
    global_load_dword v10, v9, s[16:17] sc1
    s_waitcnt vmcnt(0)
    v_readfirstlane_b32 s34, v10
    s_nop 1
    s_cmp_ge_u32 s34, 32
    s_cbranch_scc0 L_k2_poll
    s_mul_i32 s34, {s(S_NB)}, 20
    s_mul_i32 s35, {s(S_W)}, 5
    s_add_u32 s34, s34, s35
    s_mul_i32 s34, s34, 5120
    s_add_u32 s34, s34, {MF}
    """)
    Prof.stamp(A, 5)
    for k in range(5):
        for x in ld5(lambda nt: a(wa(k, nt), 4), "s34", extra=" sc1"): A(x)
        if k < 4: A("s_add_u32 s34, s34, 5120")
    for k in range(5):
        A(f"s_waitcnt vmcnt({20 - 5 * k})")
        for nt in range(5):
            for T in range(4):
                A(f"v_mfma_f32_16x16x32_bf16 {v(acc(T, nt), 4)}, {a(wa(k, nt), 4)}, {v(pq(k, T), 4)}, {v(acc(T, nt), 4)}")
    Prof.stamp(A, 8)
    A(f"""
    s_nop 7
    """)
    for T in range(4):
        lab = A.uid("L_red")
        A(f"""
        s_cmp_eq_u32 {s(S_W)}, {T}
        s_cbranch_scc1 {lab}
        s_sub_u32 s34, {s(S_W)}, {T + 1}
        s_and_b32 s34, s34, 3
        s_mul_i32 s34, s34, 5120
        s_add_u32 s34, s34, {RED + T * 15360}
        v_add_u32 v6, s34, {v(V_A)}
        """)
        for nt in range(5):
            A(f"ds_write_b128 v6, {v(acc(T, nt), 4)} offset:{1024 * nt}")
        A.label(lab)
    for T in range(4):
        lab = A.uid("L_own")
        A(f"s_cmp_eq_u32 {s(S_W)}, {T}\ns_cbranch_scc0 {lab}")
        for r in range(20):
            A(f"v_mov_b32 {v(TMP + r)}, {v(acc(T, 0) + r)}")
        A.label(lab)
    A(f"""
    s_mul_i32 s34, {s(S_W)}, 15360
    s_add_u32 s34, s34, {RED}
    v_add_u32 v6, s34, {v(V_A)}
    s_waitcnt lgkmcnt(0)
    s_barrier
    """)
    for u in range(3):
        for nt in range(5):
            A(f"ds_read_b128 {v(PQ + (u * 5 + nt) * 4, 4)}, v6 offset:{(u * 5 + nt) * 1024}")
    A("s_mov_b32 s35, 0xffff0000")
    for u in range(3):
        A(f"s_waitcnt lgkmcnt({10 - 5 * u})")
        for r in range(20):
            A(f"v_add_f32 {v(TMP + r)}, {v(TMP + r)}, {v(PQ + u * 20 + r)}")
    for nt in range(5):
        x0, x1 = V_X + 2 * nt, V_X + 2 * nt + 1
        t = TMP + 4 * nt
        A(f"""
        v_lshlrev_b32 v6, 16, {v(x0)}
        v_and_b32 v7, s35, {v(x0)}
        v_lshlrev_b32 v8, 16, {v(x1)}
        v_and_b32 v9, s35, {v(x1)}
        v_add_f32 {v(t)}, {v(t)}, v6
        v_add_f32 {v(t + 1)}, {v(t + 1)}, v7
        v_add_f32 {v(t + 2)}, {v(t + 2)}, v8
        v_add_f32 {v(t + 3)}, {v(t + 3)}, v9
        v_cvt_pk_bf16_f32 {v(t)}, {v(t)}, {v(t + 1)}
        v_cvt_pk_bf16_f32 {v(t + 1)}, {v(t + 2)}, {v(t + 3)}
        buffer_store_dwordx2 {v(t, 2)}, v30, s[4:7], 0 offen offset:{32 * nt}
        """)
    Prof.flush(A, 10, s(S_W), 6, base=0x1480000)
    A.label("L_k2_end")
    A("s_endpgm")
```

```python
import sys
from asmlib import Asm, check_hazards, Prof
from common import *
import k1

def header(launches):
    h = open('cdna_kernels/' + NAME + '.s.ref').read().split('\n')
    out = []
    for ln in h:
        if ln.startswith('; @launch') or ln.startswith('; Override') or ln.startswith('; grid='): continue
        if not ln.startswith(';'): break
        out.append(ln)
    for k, g, b, lds in launches:
        out.append(f"; @launch kernel={k} grid=({g},1,1) block=({b},1,1) lds={lds}")
    return "\n".join(out) + "\n"

def build(path, kernels=("k1",), csmode="full"):
    A = Asm()
    A('.amdgcn_target "amdgcn-amd-amdhsa--gfx950"\n.text')
    launches, descs = [], []
    if "k1" in kernels:
        k1.gen_k1(A, csmode)
        launches.append((k1.KN, 256, 512, k1.LDS_BYTES))
        descs.append(kernel_desc(k1.KN, 256, 96))
    if "k2" in kernels:
        import k2
        k2.gen_k2(A)
        launches.append((k2.KN, 256, k2.THREADS, k2.LDS_BYTES))
        descs.append(kernel_desc(k2.KN, k2.VGPRS, 96, k2.ACCUM))
    probs = check_hazards(A.lines)
    for p in probs: print("HAZARD", p)
    txt = header(launches) + A.text() + '.section .rodata,"a"\n.p2align 6\n' + "\n.p2align 6\n".join(descs)
    open(path, "w").write(txt)
    return probs

if __name__ == "__main__":
    opts = sys.argv[3:]
    if "prof" in opts:
        Prof.on = True; opts.remove("prof")
    if "exp16" in opts:
        k1.EXP16 = True; opts.remove("exp16")
    build(sys.argv[1], tuple(sys.argv[2].split(",")), *opts)
```

```python
import sys
from asmlib import Asm, check_hazards, Prof
from common import *
import k1

def header(launches):
    h = open('cdna_kernels/' + NAME + '.s.ref').read().split('\n')
    out = []
    for ln in h:
        if ln.startswith('; @launch') or ln.startswith('; Override') or ln.startswith('; grid='): continue
        if not ln.startswith(';'): break
        out.append(ln)
    for k, g, b, lds in launches:
        out.append(f"; @launch kernel={k} grid=({g},1,1) block=({b},1,1) lds={lds}")
    return "\n".join(out) + "\n"

def build(path, kernels=("k1",), csmode="full"):
    A = Asm()
    A('.amdgcn_target "amdgcn-amd-amdhsa--gfx950"\n.text')
    launches, descs = [], []
    if "k1" in kernels:
        k1.gen_k1(A, csmode)
        launches.append((k1.KN, 256, 512, k1.LDS_BYTES))
        descs.append(kernel_desc(k1.KN, 256, 96))
    if "k2" in kernels:
        import k2
        k2.gen_k2(A)
        launches.append((k2.KN, 256, k2.THREADS, k2.LDS_BYTES))
        descs.append(kernel_desc(k2.KN, k2.VGPRS, 96, k2.ACCUM))
    for i, kk in enumerate(kernels):
        if kk.startswith("e"):
            nm = f"empty{i}_kernel"
            A(f".globl {nm}\n.p2align 8\n.type {nm},@function\n{nm}:\ns_endpgm")
            launches.insert(i, (nm, int(kk[1:] or 256), 64, 0))
            descs.append(kernel_desc(nm, 8, 16))
    probs = check_hazards(A.lines)
    for p in probs: print("HAZARD", p)
    txt = header(launches) + A.text() + '.section .rodata,"a"\n.p2align 6\n' + "\n.p2align 6\n".join(descs)
    open(path, "w").write(txt)
    return probs

if __name__ == "__main__":
    opts = sys.argv[3:]
    if "prof" in opts:
        Prof.on = True; opts.remove("prof")
    if "exp16" in opts:
        k1.EXP16 = True; opts.remove("exp16")
    build(sys.argv[1], tuple(sys.argv[2].split(",")), *opts)
```

```python
from asmlib import Asm, v, a, s, Prof
from common import *

KN = "k1_kernel"
ST = ""
EXP16 = False
WSLOT = 24832
SEGB = 12288 + 128
XBASE = 4 * WSLOT
XSLOT = 16384
CSB = XBASE + 3 * XSLOT
LDS_BYTES = 163840

V_L = 1
V_T0 = 2
V_CS = 92
V_DX = 98
V_WR = 100
V_XR = 104
V_DW = 108
V_WF = 112
V_XF = 136
V_ACC = 160

S_W = 3; S_RB = 18; S_TYPE = 19; S_C = 20
S_WSO = 21; S_WSTEP = 22; S_XSO = 23; S_WDST = 24; S_WPAIR = 25; S_XDST = 26
S_XCUR = 27; S_XPREV = 28; S_IT = 29; S_WDELTA = 30; S_T = 31
S_SH = 48; S_TB = 49; S_ONES = 50; S_XG = 51; S_XD = 52

def acc(T, t): return V_ACC + (T * 3 + t) * 16
def wf(st, t): return V_WF + st * 12 + t * 4
def xf(st, T): return V_XF + st * 8 + T * 4

class LQ:
    def __init__(self, A): self.A = A; self.q = []
    def issue(self, text, regs):
        self.A(text); self.q.append(set(regs))
    def need(self, regs):
        regs = set(regs); last = -1
        for i, r in enumerate(self.q):
            if r & regs: last = i
        if last >= 0:
            n = len(self.q) - 1 - last
            self.A(f"s_waitcnt lgkmcnt({n})")
            self.q = self.q[last + 1:]
    def drain(self): self.q = []

def rng(b, n): return range(b, b + n)

def reads_for(b, st, P, k2, nextit=False):
    R = []
    kap = 2 * P + k2
    for T in range(2):
        R.append((f"ds_read_b128 {v(xf(st, T), 4)}, {v(V_XR + kap)} offset:{T * 4096}", rng(xf(st, T), 4)))
    for t in range(b):
        for p in range(2):
            off = P * WSLOT + (16 * k2 + 4 * p) * 384
            R.append((f"ds_read_b64_tr_b16 {v(wf(st, t) + 2 * p, 2)}, {v(V_WR + t)} offset:{off}", rng(wf(st, t) + 2 * p, 2)))
    return R

def kstep(A, lq, b, st, extra, csmode, k2, waits=True):
    mf = [(T, t) for t in range(b) for T in range(2)]
    extra = list(extra)
    per = -(-len(extra) // len(mf))
    for n, (T, t) in enumerate(mf):
        if waits:
            lq.need(list(rng(wf(st, t), 4)) + list(rng(xf(st, T), 4)))
        if EXP16:
            for hh in range(2):
                ac = acc(T, t) + 8 * k2 + 4 * hh
                A(f"v_mfma_f32_16x16x32_bf16 {v(ac, 4)}, {v(wf(st, t), 4)}, {v(xf(st, T), 4)}, {v(ac, 4)}")
        else:
            A(f"v_mfma_f32_32x32x16_bf16 {v(acc(T, t), 16)}, {v(wf(st, t), 4)}, {v(xf(st, T), 4)}, {v(acc(T, t), 16)}")
        for _ in range(per):
            if extra:
                e = extra.pop(0)
                e() if callable(e) else A(e)
        if csmode == "full" and T == 1:
            for j in range(4):
                A(f"v_dot2c_f32_bf16 {v(V_CS + t)}, {s(S_ONES)}, {v(wf(st, t) + j)}")
    assert not extra
    if csmode == "split":
        lab = A.uid("L_cs")
        A(f"s_cmp_lg_u32 {s(S_SH)}, {k2}")
        A(f"s_cbranch_scc1 {lab}")
        for t in range(b):
            for j in range(4):
                A(f"v_dot2c_f32_bf16 {v(V_CS + t)}, {s(S_ONES)}, {v(wf(st, t) + j)}")
        A.label(lab)

def dma_batch(P):
    L = []
    L.append(f"s_add_u32 {s(S_T)}, {s(S_WDST)}, {s(S_WPAIR)}" + (f"\ns_add_u32 {s(S_T)}, {s(S_T)}, {WSLOT}" if P else "") + f"\ns_mov_b32 m0, {s(S_T)}\ns_nop 0")
    for j in range(3):
        L.append(f"buffer_load_dwordx4 {v(V_DW + j)}, {s(4, 4)}, {s(S_WSO)} offen offset:{1024 * j} lds")
    slot = S_XPREV if P == 0 else S_XCUR
    half = 1 if P == 0 else 0
    L.append(f"s_add_u32 {s(S_T)}, {s(S_XDST)}, {s(slot)}" + (f"\ns_add_u32 {s(S_T)}, {s(S_T)}, {1024}" if half else "") +
             f"\ns_mov_b32 m0, {s(S_T)}\ns_add_u32 {s(S_WSO)}, {s(S_WSO)}, {s(S_WSTEP)}"
             f"\ns_cmp_lt_u32 {s(S_XG)}, 10\ns_cselect_b32 {s(S_T)}, {s(S_XD)}, 0x7f000000")
    L.append(f"buffer_load_dwordx4 {v(V_DX + half)}, {s(8, 4)}, {s(S_T)} offen lds")
    if P == 0:
        L.append(f"s_add_u32 {s(S_XG)}, {s(S_XG)}, 1\ns_add_u32 {s(S_XD)}, {s(S_XD)}, 128")
    return L

def main_loop(A, b, csmode):
    lab = A.uid("L_loop")
    lq = LQ(A)
    for txt, regs in reads_for(b, 0, 0, 0):
        lq.q.append(set(regs))
    A.label(lab)
    for P in range(2):
        ex = [lambda r=r: lq.issue(*r) for r in reads_for(b, 1, P, 1)]
        kstep(A, lq, b, 0, ex, csmode, 0)
        A("s_waitcnt vmcnt(8) lgkmcnt(0)")
        lq.drain()
        A("s_barrier")
        pre = []
        if P == 1:
            for t in range(3):
                pre.append(f"v_add_u32 {v(V_WR + t)}, {s(S_WDELTA)}, {v(V_WR + t)}")
            pre.append(f"s_mov_b32 {s(S_T)}, {XSLOT}\ns_cmp_eq_u32 {s(S_XCUR)}, {2 * XSLOT}\ns_cmov_b32 {s(S_T)}, {hex(-2 * XSLOT & 0xffffffff)}")
            for k in range(4):
                pre.append(f"v_add_u32 {v(V_XR + k)}, {s(S_T)}, {v(V_XR + k)}")
            for x in pre: A(x)
            nxt = reads_for(b, 0, 0, 0)
        else:
            nxt = reads_for(b, 0, 1, 0)
        ex = [lambda r=r: lq.issue(*r) for r in nxt]
        d = dma_batch(P)
        kstep(A, lq, b, 1, ex + d, csmode, 1, waits=False)
        if P == 1:
            A(f"s_mov_b32 {s(S_XPREV)}, {s(S_XCUR)}")
            A(f"s_add_u32 {s(S_XCUR)}, {s(S_XCUR)}, {XSLOT}")
            A(f"s_cmp_eq_u32 {s(S_XCUR)}, {3 * XSLOT}\ns_cselect_b32 {s(S_XCUR)}, 0, {s(S_XCUR)}")
            A(f"s_sub_u32 {s(S_WDELTA)}, 0, {s(S_WDELTA)}")
            A(f"s_xor_b32 {s(S_WPAIR)}, {s(S_WPAIR)}, {2 * WSLOT}")
    A(f"s_add_u32 {s(S_IT)}, {s(S_IT)}, 1")
    A(f"s_cmp_lt_u32 {s(S_IT)}, 10")
    A(f"s_cbranch_scc1 {lab}")

def setup_main(A):
    A(f"""
    s_and_b32 s32, s2, 7
    s_lshr_b32 s33, s2, 3
    s_and_b32 s34, s32, 1
    s_lshr_b32 s35, s32, 1
    s_lshl_b32 {s(S_RB)}, s34, 3
    s_and_b32 s34, s33, 7
    s_add_u32 {s(S_RB)}, {s(S_RB)}, s34
    s_lshr_b32 s33, s33, 3
    s_lshl_b32 s34, s35, 2
    s_add_u32 s34, s34, s33
    s_cmp_eq_u32 s35, 3
    s_cselect_b32 s33, 1, 0
    s_sub_u32 s34, s34, s33
    """)
    A(f"""
    s_mov_b32 {s(S_TYPE)}, 0
    s_mov_b32 {s(S_C)}, s34
    s_cmp_ge_u32 s34, 9
    s_cselect_b32 {s(S_TYPE)}, 1, {s(S_TYPE)}
    s_cselect_b32 s33, 9, 0
    s_cmp_ge_u32 s34, 11
    s_cselect_b32 {s(S_TYPE)}, 2, {s(S_TYPE)}
    s_cselect_b32 s33, 11, s33
    s_sub_u32 {s(S_C)}, s34, s33
    """)
    A(f"""
    s_lshr_b32 s32, {s(S_W)}, 2
    s_and_b32 {s(S_SH)}, {s(S_W)}, 1
    s_cmp_eq_u32 {s(S_TYPE)}, 0
    s_cbranch_scc0 L_setup_qkv
    s_cmp_eq_u32 s32, 0
    s_cselect_b32 s4, s40, s42
    s_cselect_b32 s5, s41, s43
    s_mov_b32 s6, {WG_BYTES}
    s_mov_b32 s33, 3456
    s_mul_i32 {s(S_WSO)}, {s(S_C)}, 384
    s_mov_b32 s34, 24
    s_mov_b32 s35, 3
    s_branch L_setup_done
    L_setup_qkv:
    s_mov_b32 s4, s38
    s_mov_b32 s5, s39
    s_mov_b32 s6, {WQKV_BYTES}
    s_mov_b32 s33, 3840
    s_mov_b32 s34, 20
    s_mov_b32 s35, 2
    s_cmp_eq_u32 {s(S_TYPE)}, 1
    s_cbranch_scc0 L_setup_kv
    s_mul_i32 {s(S_WSO)}, {s(S_C)}, 640
    s_mul_i32 s53, s32, 320
    s_add_u32 {s(S_WSO)}, {s(S_WSO)}, s53
    s_branch L_setup_done
    L_setup_kv:
    s_mul_i32 {s(S_WSO)}, {s(S_C)}, 320
    s_mul_i32 s53, s32, 1280
    s_add_u32 {s(S_WSO)}, {s(S_WSO)}, s53
    s_add_u32 {s(S_WSO)}, {s(S_WSO)}, 1280
    L_setup_done:
    s_mov_b32 s7, 0x20000
    s_lshl_b32 {s(S_WSTEP)}, s33, 5
    s_mov_b32 s8, s36
    s_mov_b32 s9, s37
    s_mov_b32 s10, {X_BYTES}
    s_mov_b32 s11, 0x20000
    s_mul_i32 {s(S_XSO)}, {s(S_RB)}, {128 * 1280}
    s_mov_b32 {s(S_ONES)}, 0x3f803f80
    """)
    A(f"""
    s_lshr_b32 s53, {s(S_W)}, 1
    s_and_b32 s53, s53, 1
    s_cmp_eq_u32 s32, 0
    s_cselect_b32 s54, 3, s35
    s_mul_i32 s53, s53, s54
    s_cselect_b32 s54, 0, 6
    s_add_u32 {s(S_TB)}, s53, s54
    """)
    L = V_L
    for j in range(3):
        A(f"""
        v_add_u32 v2, {64 * j}, {v(L)}
        v_mul_u32_u24 v3, 2731, v2
        v_lshrrev_b32 v3, 16, v3
        v_mul_u32_u24 v4, 24, v3
        v_sub_u32 v4, v2, v4
        v_and_b32 v5, 3, v3
        v_lshlrev_b32 v5, 1, v5
        v_xor_b32 v5, v5, v4
        v_and_b32 v5, 7, v5
        v_and_b32 v4, 24, v4
        v_or_b32 v4, v4, v5
        s_and_b32 s53, {s(S_W)}, 3
        s_lshl_b32 s53, s53, 3
        v_add_u32 v3, s53, v3
        v_mul_lo_u32 v3, v3, s33
        v_lshl_add_u32 v3, v4, 4, v3
        v_subrev_u32 v3, {1024 * j}, v3
        v_cmp_gt_u32 vcc, s34, v4
        v_mov_b32 v5, 0x40000000
        s_nop 1
        v_cndmask_b32 {v(V_DW + j)}, v5, v3, vcc
        """)
    A(f"""
    v_lshrrev_b32 v2, 3, {v(L)}
    s_lshl_b32 s53, {s(S_W)}, 4
    v_add_u32 v2, s53, v2
    v_mul_u32_u24 v3, 1280, v2
    v_lshrrev_b32 v4, 4, {v(L)}
    v_xor_b32 v4, v4, {v(L)}
    v_and_b32 v4, 7, v4
    v_lshl_add_u32 {v(V_DX)}, v4, 4, v3
    v_xor_b32 v4, 4, v4
    v_lshl_add_u32 v4, v4, 4, v3
    v_add_u32 {v(V_DX + 1)}, {8 * 1280}, v4
    """)
    A(f"""
    s_mul_i32 {s(S_WDST)}, s32, {SEGB}
    s_and_b32 s53, {s(S_W)}, 3
    s_mul_i32 s53, s53, 3072
    s_add_u32 {s(S_WDST)}, {s(S_WDST)}, s53
    s_lshl_b32 {s(S_XDST)}, {s(S_W)}, 11
    s_add_u32 {s(S_XDST)}, {s(S_XDST)}, {XBASE}
    """)
    def wdma(slot):
        A(f"s_add_u32 {s(S_T)}, {s(S_WDST)}, {slot * WSLOT}\ns_mov_b32 m0, {s(S_T)}\ns_nop 0")
        for j in range(3):
            A(f"buffer_load_dwordx4 {v(V_DW + j)}, {s(4, 4)}, {s(S_WSO)} offen offset:{1024 * j} lds")
        A(f"s_add_u32 {s(S_WSO)}, {s(S_WSO)}, {s(S_WSTEP)}")
    def xdma(g, half):
        A(f"s_add_u32 {s(S_T)}, {s(S_XDST)}, {g * XSLOT + half * 1024}\ns_mov_b32 m0, {s(S_T)}\ns_add_u32 {s(S_T)}, {s(S_XSO)}, {g * 128}")
        A(f"buffer_load_dwordx4 {v(V_DX + half)}, {s(8, 4)}, {s(S_T)} offen lds")
    xdma(0, 0); xdma(0, 1); wdma(0); wdma(1); xdma(1, 0); xdma(1, 1); wdma(2); wdma(3); xdma(2, 0)
    A(f"""
    v_lshrrev_b32 v2, 4, {v(L)}
    v_and_b32 v3, 1, v2
    v_lshrrev_b32 v2, 1, v2
    v_bfe_u32 v4, {v(L)}, 2, 2
    v_lshl_add_u32 v5, v2, 3, v4
    v_mul_u32_u24 v5, 384, v5
    v_mul_u32_u24 v3, {SEGB}, v3
    v_add_u32 v5, v5, v3
    v_and_b32 v6, 1, {v(L)}
    v_bfe_u32 v7, {v(L)}, 1, 1
    v_lshl_add_u32 v5, v7, 3, v5
    v_lshlrev_b32 v4, 1, v4
    """)
    for t in range(3):
        A(f"""
        s_add_u32 s53, {s(S_TB)}, {t}
        s_lshl_b32 s53, s53, 1
        v_add_u32 v8, s53, v6
        v_xor_b32 v9, v8, v4
        v_and_b32 v9, 7, v9
        v_and_b32 v8, 24, v8
        v_or_b32 v8, v8, v9
        v_lshl_add_u32 {v(V_WR + t)}, v8, 4, v5
        """)
    A(f"""
    v_and_b32 v2, 31, {v(L)}
    s_lshl_b32 s53, {s(S_SH)}, 6
    v_add_u32 v3, s53, v2
    v_lshlrev_b32 v3, 7, v3
    v_add_u32 v3, {XBASE}, v3
    v_bfe_u32 v4, {v(L)}, 1, 3
    v_lshrrev_b32 v5, 5, {v(L)}
    """)
    for k in range(4):
        A(f"""
        v_add_u32 v6, {2 * k}, v5
        v_xor_b32 v6, v6, v4
        v_lshl_add_u32 {v(V_XR + k)}, v6, 4, v3
        """)
    for r in range(V_ACC, V_ACC + 96):
        A(f"v_mov_b32 {v(r)}, 0")
    for t in range(3):
        A(f"v_mov_b32 {v(V_CS + t)}, 0")
    A(f"""
    s_mov_b32 {s(S_IT)}, 0
    s_mov_b32 {s(S_WPAIR)}, 0
    s_mov_b32 {s(S_WDELTA)}, {2 * WSLOT}
    s_mov_b32 {s(S_XCUR)}, 0
    s_mov_b32 {s(S_XPREV)}, {2 * XSLOT}
    s_mov_b32 {s(S_XG)}, 2
    s_add_u32 {s(S_XD)}, {s(S_XSO)}, {2 * 128}
    s_waitcnt vmcnt(12)
    s_barrier
    """)
    Prof.stamp(A, 2); Prof.stamp(A, 8, real=True)

def first_reads(A, b):
    for txt, regs in reads_for(b, 0, 0, 0):
        A(txt)

V_M = 2
V_RS = 6
V_CSV = 16
V_TMP = 32
LOG2E = 0x3fb8aa3b
EPS6 = 0x358637bd

def epi_common(A, csmode):
    L = V_L
    Prof.stamp(A, 3); Prof.stamp(A, 9, real=True)
    A("s_waitcnt vmcnt(0) lgkmcnt(0)")
    for t in range(3):
        A(f"v_mov_b32 v8, {v(V_CS + t)}")
        A(f"v_mov_b32 v9, {v(V_CS + t)}")
        A("s_nop 1")
        A("v_permlane32_swap_b32 v8, v9")
        A("s_nop 1")
        A(f"v_add_f32 {v(V_CS + t)}, v8, v9")
    A(f"""
    v_and_b32 v8, 31, {v(L)}
    v_lshlrev_b32 v8, 2, v8
    s_mul_i32 s53, {s(S_W)}, 384
    s_add_u32 s53, s53, {CSB}
    v_add_u32 v8, s53, v8
    """)
    for t in range(3):
        A(f"ds_write_b32 v8, {v(V_CS + t)} offset:{128 * t}")
    lab = A.uid("L_poll"); done = A.uid("L_polled")
    A(f"""
    s_cmp_lg_u32 {s(S_W)}, 0
    s_cbranch_scc1 {done}
    s_lshl_b32 s53, {s(S_RB)}, 2
    v_mov_b32 v9, s53
    {lab}:
    global_load_dword v10, v9, s[16:17] sc1
    s_waitcnt vmcnt(0)
    v_readfirstlane_b32 s53, v10
    s_nop 1
    s_cmp_ge_u32 s53, 8
    s_cbranch_scc1 {done}
    s_sleep 2
    s_branch {lab}
    {done}:
    s_waitcnt lgkmcnt(0)
    s_barrier
    """)
    Prof.stamp(A, 4)
    A(f"""
    v_and_b32 v8, 31, {v(L)}
    s_lshl_b32 s53, {s(S_RB)}, 7
    s_lshl_b32 s54, {s(S_SH)}, 6
    s_add_u32 s53, s53, s54
    v_add_u32 v8, s53, v8
    v_lshlrev_b32 v8, 3, v8
    v_add_u32 v8, {STAT}, v8
    buffer_load_dwordx2 v[2:3], v8, s[12:15], 0 offen sc1
    buffer_load_dwordx2 v[4:5], v8, s[12:15], 0 offen offset:256 sc1
    """)
    A(f"""
    v_lshrrev_b32 v10, 5, {v(L)}
    v_lshlrev_b32 v10, 4, v10
    s_mul_i32 s53, {s(S_W)}, 384
    s_add_u32 s53, s53, {CSB}
    v_add_u32 v10, s53, v10
    """)
    if csmode == "split":
        A(f"""
        s_xor_b32 s54, {s(S_W)}, 1
        s_mul_i32 s54, s54, 384
        s_add_u32 s54, s54, {CSB}
        v_lshrrev_b32 v11, 5, {v(L)}
        v_lshlrev_b32 v11, 4, v11
        v_add_u32 v11, s54, v11
        """)
    A("s_waitcnt vmcnt(0)")
    A("v_sub_f32 v2, 0, v2\nv_sub_f32 v4, 0, v4")

def load_cs(A, t, csmode):
    for j in range(4):
        A(f"ds_read_b128 {v(V_CSV + 4 * j, 4)}, v10 offset:{128 * t + 32 * j}")
    if csmode == "split":
        for j in range(4):
            A(f"ds_read_b128 {v(V_TMP + 4 * j, 4)}, v11 offset:{128 * t + 32 * j}")
        A("s_waitcnt lgkmcnt(0)")
        for j in range(8):
            A(f"v_pk_add_f32 {v(V_CSV + 2 * j, 2)}, {v(V_CSV + 2 * j, 2)}, {v(V_TMP + 2 * j, 2)}")
    else:
        A("s_waitcnt lgkmcnt(0)")

def center(A, T, t):
    m = 2 + 2 * T
    for q in range(8):
        r = acc(T, t) + 2 * q
        A(f"v_pk_fma_f32 {v(r, 2)}, {v(V_CSV + 2 * q, 2)}, {v(m, 2)}, {v(r, 2)} op_sel_hi:[1,0,1]")

def epi_gu(A, csmode):
    L = V_L
    A("v_mul_f32 v6, v3, v3\nv_mul_f32 v8, v5, v5")
    A(f"""
    v_bfe_u32 v12, {v(L)}, 4, 1
    v_lshlrev_b32 v12, 10, v12
    v_lshrrev_b32 v13, 5, {v(L)}
    v_lshl_add_u32 v12, v13, 8, v12
    v_and_b32 v13, 15, {v(L)}
    v_lshl_add_u32 v12, v13, 4, v12
    s_lshl_b32 s55, {s(S_RB)}, 1
    s_add_u32 s55, s55, {s(S_SH)}
    s_mul_i32 s55, s55, 54
    s_mul_i32 s56, {s(S_C)}, 12
    s_add_u32 s56, s56, {s(S_TB)}
    """)
    for t in range(3):
        load_cs(A, t, csmode)
        A(f"""
        s_add_u32 s57, s56, {t}
        s_lshr_b32 s58, s57, 1
        s_add_u32 s58, s58, s55
        s_lshl_b32 s58, s58, 12
        s_and_b32 s57, s57, 1
        s_lshl_b32 s57, s57, 9
        s_add_u32 s58, s58, s57
        """)
        for T in range(2):
            center(A, T, t)
            r = acc(T, t)
            rs = 6 + 2 * T
            for q in range(4):
                A(f"v_pk_mul_f32 {v(r + 2 * q, 2)}, {v(r + 2 * q, 2)}, {v(r + 8 + 2 * q, 2)}")
            for q in range(4):
                A(f"v_pk_mul_f32 {v(r + 2 * q, 2)}, {v(r + 2 * q, 2)}, {v(rs, 2)} op_sel_hi:[1,0]")
            for q in range(4):
                A(f"v_cvt_pk_bf16_f32 {v(r + 8 + q)}, {v(r + 2 * q)}, {v(r + 2 * q + 1)}")
            A(f"buffer_store_dwordx4 {v(r + 8, 4)}, v12, s[12:15], s58 offen offset:{2048 * T}{ST}")

def phi8(A, r, T, n, tmp):
    rs = 3 + 2 * T
    rl = 6 + 2 * T
    rr = 10
    for q in range(n // 2):
        A(f"v_pk_mul_f32 {v(tmp + 2 * q, 2)}, {v(r + 2 * q, 2)}, {v(rl, 2)} op_sel_hi:[1,0]")
    for q in range(n):
        A(f"v_max_f32 {v(r + q)}, 0, {v(r + q)}")
    for q in range(n):
        A(f"v_exp_f32 {v(tmp + q)}, {v(tmp + q)} clamp")
    for q in range(n):
        A(f"v_fma_f32 {v(r + q)}, {v(r + q)}, {v(rs)}, v14")
    for q in range(n // 2):
        A(f"v_pk_add_f32 {v(r + 2 * q, 2)}, {v(r + 2 * q, 2)}, {v(tmp + 2 * q, 2)}")

def epi_q(A, csmode, b):
    L = V_L
    A(f"v_mul_f32 v6, {hex(LOG2E)}, v3\nv_mul_f32 v8, {hex(LOG2E)}, v5\nv_mov_b32 v14, {hex(EPS6)}")
    A(f"""
    v_bfe_u32 v12, {v(L)}, 4, 1
    v_lshlrev_b32 v12, 10, v12
    v_and_b32 v13, 15, {v(L)}
    v_lshl_add_u32 v12, v13, 4, v12
    v_lshrrev_b32 v13, 5, {v(L)}
    s_lshl_b32 s55, {s(S_RB)}, 1
    s_add_u32 s55, s55, {s(S_SH)}
    s_mul_i32 s55, s55, 20
    s_mul_i32 s56, {s(S_C)}, 10
    s_add_u32 s55, s55, s56
    s_lshl_b32 s55, s55, 12
    s_add_u32 s55, s55, {PQF}
    s_add_u32 s56, s55, {5 * 4096}
    """)
    for t in range(b):
        load_cs(A, t, csmode)
        A(f"""
        s_add_u32 s57, {s(S_TB)}, {t}
        s_lshl_b32 s57, s57, 1
        v_add_u32 v15, s57, v13
        v_mul_u32_u24 v64, 52, v15
        v_lshrrev_b32 v64, 8, v64
        v_mul_u32_u24 v65, 5, v64
        v_sub_u32 v15, v15, v65
        v_lshlrev_b32 v15, 12, v15
        v_lshl_add_u32 v15, v64, 8, v15
        v_add_u32 v15, v15, v12
        """)
        for T in range(2):
            center(A, T, t)
            r = acc(T, t)
            phi8(A, r, T, 16, V_TMP)
            for q in range(8):
                A(f"v_cvt_pk_bf16_f32 {v(V_TMP + q)}, {v(r + 2 * q)}, {v(r + 2 * q + 1)}")
            A(f"buffer_store_dwordx4 {v(V_TMP, 4)}, v15, s[12:15], s55 offen offset:{2048 * T}{ST}")
            A(f"buffer_store_dwordx4 {v(V_TMP + 4, 4)}, v15, s[12:15], s56 offen offset:{2048 * T}{ST}")
            A("s_nop 1")

def epi_kv(A, csmode, b):
    L = V_L
    A(f"v_mul_f32 v6, {hex(LOG2E)}, v3\nv_mul_f32 v8, {hex(LOG2E)}, v5\nv_mov_b32 v14, {hex(EPS6)}")
    A(f"""
    v_and_b32 v12, 31, {v(L)}
    s_lshl_b32 s55, {s(S_SH)}, 6
    v_add_u32 v12, s55, v12
    v_mul_u32_u24 v12, 320, v12
    v_lshrrev_b32 v13, 5, {v(L)}
    v_lshl_add_u32 v12, v13, 4, v12
    s_lshl_b32 s55, {s(S_TB)}, 5
    v_add_u32 v12, s55, v12
    """)
    for t in range(b):
        load_cs(A, t, csmode)
        for T in range(2):
            center(A, T, t)
            r = acc(T, t)
            phi8(A, r, T, 8, V_TMP)
            rsp = 2 + 2 * T
            for q in range(4):
                A(f"v_pk_mul_f32 {v(r + 8 + 2 * q, 2)}, {v(r + 8 + 2 * q, 2)}, {v(rsp, 2)} op_sel:[0,1] op_sel_hi:[1,1]")
            for q in range(8):
                A(f"v_cvt_pk_bf16_f32 {v(V_TMP + q)}, {v(r + 2 * q)}, {v(r + 2 * q + 1)}")
            A(f"ds_write_b128 v12, {v(V_TMP, 4)} offset:{T * 32 * 320 + 32 * t}")
            A(f"ds_write_b128 v12, {v(V_TMP + 4, 4)} offset:{40960 + T * 32 * 320 + 32 * t}")

def epi_kv_tail(A):
    L = V_L
    A("s_waitcnt lgkmcnt(0)\ns_barrier")
    A(f"""
    v_lshrrev_b32 v2, 5, {v(L)}
    v_bfe_u32 v3, {v(L)}, 2, 2
    v_lshl_add_u32 v2, v2, 3, v3
    v_mul_u32_u24 v2, 320, v2
    v_bfe_u32 v3, {v(L)}, 4, 1
    v_lshl_add_u32 v2, v3, 5, v2
    v_and_b32 v3, 3, {v(L)}
    v_lshl_add_u32 v2, v3, 3, v2
    s_mul_i32 s55, {s(S_W)}, 40
    v_add_u32 v2, s55, v2
    v_mov_b32 v4, {s(S_ONES)}
    v_mov_b32 v5, {s(S_ONES)}
    v_mov_b32 v6, {s(S_ONES)}
    v_mov_b32 v7, {s(S_ONES)}
    v_add_u32 v8, 40960, v2
    """)
    D1, D2 = 160, 176
    for r in range(32):
        A(f"v_mov_b32 {v(D1 + r)}, 0")
    for st in range(8):
        base = 32 + 8 * st
        for p in range(2):
            A(f"ds_read_b64_tr_b16 {v(base + 2 * p, 2)}, v2 offset:{(16 * st + 4 * p) * 320}")
        for p in range(2):
            A(f"ds_read_b64_tr_b16 {v(base + 4 + 2 * p, 2)}, v8 offset:{(16 * st + 4 * p) * 320}")
    for st in range(8):
        base = 32 + 8 * st
        A(f"s_waitcnt lgkmcnt({min(15, 4 * (7 - st))})")
        A(f"v_mfma_f32_32x32x16_bf16 {v(D1, 16)}, {v(base, 4)}, {v(base + 4, 4)}, {v(D1, 16)}")
        A(f"v_mfma_f32_32x32x16_bf16 {v(D2, 16)}, {v(base, 4)}, {v(4, 4)}, {v(D2, 16)}")
    A(f"""
    v_and_b32 v8, 31, {v(L)}
    v_lshrrev_b32 v9, 5, {v(L)}
    v_mul_u32_u24 v10, 80, v8
    s_lshl_b32 s55, {s(S_C)}, 3
    s_add_u32 s55, s55, {s(S_W)}
    s_mul_i32 s54, s55, 80
    s_lshl_b32 s55, s55, 4
    s_add_u32 s55, s55, {s(S_RB)}
    s_mul_i32 s55, s55, {KVP_BLK}
    s_add_u32 s55, s55, {KVP}
    s_mul_i32 s53, {s(S_RB)}, 2560
    s_add_u32 s54, s54, s53
    s_add_u32 s54, s54, {ZP}
    v_add_u32 v10, s55, v10
    v_mov_b32 v11, s54
    v_cmp_eq_u32 vcc, 20, v8
    s_nop 1
    v_cndmask_b32 v10, v10, v11, vcc
    v_lshl_add_u32 v10, v9, 4, v10
    s_nop 4
    """)
    for r in range(12):
        A(f"v_cndmask_b32 {v(D1 + r)}, {v(D1 + r)}, {v(D2 + r)}, vcc")
    A(f"""
    v_cmp_ge_u32 vcc, 20, v8
    s_and_saveexec_b64 s[56:57], vcc
    buffer_store_dwordx4 {v(D1, 4)}, v10, s[12:15], 0 offen{ST}
    buffer_store_dwordx4 {v(D1 + 4, 4)}, v10, s[12:15], 0 offen offset:32{ST}
    v_cmp_eq_u32 vcc, 0, v9
    s_and_b64 exec, exec, vcc
    buffer_store_dwordx4 {v(D1 + 8, 4)}, v10, s[12:15], 0 offen offset:64{ST}
    s_mov_b64 exec, s[56:57]
    """)

def side(A):
    L = V_L
    J = 18
    A(f"""
    s_and_b32 s32, s2, 1
    s_lshl_b32 s32, s32, 3
    s_lshr_b32 s33, s2, 3
    s_add_u32 {s(J)}, s32, s33
    s_mov_b32 s8, s36
    s_mov_b32 s9, s37
    s_mov_b32 s10, {X_BYTES}
    s_mov_b32 s11, 0x20000
    s_load_dwordx2 s[60:61], s[0:1], 16
    s_load_dwordx2 s[62:63], s[0:1], 48
    """)
    A(f"""
    v_lshrrev_b32 v2, 4, {v(L)}
    s_lshl_b32 s32, {s(J)}, 7
    s_lshl_b32 s33, {s(S_W)}, 4
    s_add_u32 s32, s32, s33
    v_add_u32 v2, s32, v2
    v_mul_u32_u24 v3, 1280, v2
    v_and_b32 v4, 15, {v(L)}
    v_lshl_add_u32 v3, v4, 4, v3
    s_mov_b32 {s(S_ONES)}, 0x3f803f80
    """)
    for g in range(4):
        for i in range(5):
            A(f"buffer_load_dwordx4 {v(32 + 20 * g + 4 * i, 4)}, v3, s[8:11], 0 offen offset:{256 * i}")
        if g < 3: A(f"v_add_u32 v3, {4 * 1280}, v3")
    for g in range(4):
        A(f"s_waitcnt vmcnt({15 - 5 * g})")
        S1, S2 = 8 + 2 * g, 9 + 2 * g
        A(f"v_mov_b32 {v(S1)}, 0\nv_mov_b32 {v(S2)}, 0")
        for i in range(20):
            r = 32 + 20 * g + i
            A(f"v_dot2c_f32_bf16 {v(S1)}, {s(S_ONES)}, {v(r)}")
            A(f"v_dot2c_f32_bf16 {v(S2)}, {v(r)}, {v(r)}")
    for sh in (8, 4, 2, 1):
        A("s_nop 1")
        for r in range(8, 16):
            A(f"v_add_f32_dpp {v(r)}, {v(r)}, {v(r)} row_ror:{sh} row_mask:0xf bank_mask:0xf")
    A("s_mov_b32 s34, 0x3acccccd\ns_mov_b32 s35, 0x3727c5ac")
    for g in range(4):
        S1, S2 = 8 + 2 * g, 9 + 2 * g
        A(f"""
        v_mul_f32 {v(S1)}, s34, {v(S1)}
        v_mul_f32 {v(S2)}, s34, {v(S2)}
        v_fma_f32 {v(S2)}, -{v(S1)}, {v(S1)}, {v(S2)}
        v_max_f32 {v(S2)}, 0, {v(S2)}
        v_cvt_pk_bf16_f32 v20, {v(S1)}, {v(S2)}
        v_lshlrev_b32 {v(S1)}, 16, v20
        v_and_b32 {v(S2)}, 0xffff0000, v20
        v_add_f32 {v(S2)}, s35, {v(S2)}
        v_cvt_pk_bf16_f32 v20, {v(S2)}, {v(S2)}
        v_lshlrev_b32 v20, 16, v20
        v_sqrt_f32 v20, v20
        s_nop 0
        v_cvt_pk_bf16_f32 v20, v20, v20
        v_lshlrev_b32 v20, 16, v20
        v_rcp_f32 {v(S2)}, v20
        """)
    A(f"""
    v_lshlrev_b32 v2, 3, v2
    v_add_u32 v2, {STAT}, v2
    v_and_b32 v4, 15, {v(L)}
    v_cmp_eq_u32 vcc, 0, v4
    s_and_saveexec_b64 s[56:57], vcc
    """)
    for g in range(4):
        A(f"buffer_store_dwordx2 {v(8 + 2 * g, 2)}, v2, s[12:15], 0 offen offset:{32 * g} sc1")
    A(f"""
    s_waitcnt vmcnt(0)
    v_cmp_eq_u32 vcc, 0, {v(L)}
    s_and_b64 exec, exec, vcc
    s_lshl_b32 s32, {s(J)}, 2
    v_mov_b32 v5, s32
    v_mov_b32 v6, 1
    global_atomic_add v5, v6, s[16:17] sc1
    s_mov_b64 exec, s[56:57]
    """)
    Prof.stamp(A, 2)
    A(f"""
    s_waitcnt lgkmcnt(0)
    s_mov_b32 s4, s62
    s_mov_b32 s5, s63
    s_mov_b32 s6, {WD_BYTES}
    s_mov_b32 s7, 0x20000
    s_mov_b32 s8, s60
    s_mov_b32 s9, s61
    s_mov_b32 s10, {WO_BYTES}
    """)
    for i in range(5):
        A(f"""
        s_mul_i32 s32, {s(S_W)}, 320
        s_add_u32 s32, s32, {64 * i}
        v_add_u32 v2, s32, {v(L)}
        v_mul_u32_u24 v3, 3277, v2
        v_lshrrev_b32 v3, 18, v3
        v_mul_u32_u24 v4, 80, v3
        v_sub_u32 v4, v2, v4
        v_and_b32 v5, 3, v3
        v_lshlrev_b32 v5, 1, v5
        v_xor_b32 v5, v5, v4
        v_and_b32 v5, 7, v5
        v_and_b32 v4, 0x78, v4
        v_or_b32 v4, v4, v5
        v_mul_u32_u24 v3, 1280, v3
        v_lshl_add_u32 {v(20 + i)}, v4, 4, v3
        """)
    A(f"""
    v_lshrrev_b32 v2, 4, {v(L)}
    v_bfe_u32 v3, {v(L)}, 2, 2
    v_lshl_add_u32 v4, v2, 3, v3
    v_mul_u32_u24 v4, 1280, v4
    v_and_b32 v5, 1, {v(L)}
    v_lshl_add_u32 v4, v5, 3, v4
    v_bfe_u32 v5, {v(L)}, 1, 1
    v_lshlrev_b32 v3, 1, v3
    """)
    for n in range(5):
        A(f"""
        s_mul_i32 s32, {s(S_W)}, 10
        s_add_u32 s32, s32, {2 * n}
        v_add_u32 v6, s32, v5
        v_xor_b32 v7, v6, v3
        v_and_b32 v7, 7, v7
        v_and_b32 v6, 0x78, v6
        v_or_b32 v6, v6, v7
        v_lshl_add_u32 {v(26 + n)}, v6, 4, v4
        """)
    A(f"v_lshlrev_b32 v31, 4, {v(L)}\nv_lshrrev_b32 v2, 4, {v(L)}")
    A("v_cmp_gt_u32 s[64:65], 3, v2\nv_cmp_gt_u32 s[66:67], 2, v2")
    A("s_mov_b32 s33, 0")
    A.label("L_side_job")
    A(f"""
    s_cmp_lt_u32 s33, 4
    s_cbranch_scc0 L_side_wo
    s_lshl_b32 s34, s33, 4
    s_add_u32 s34, s34, {s(J)}
    s_cmp_lt_u32 s34, 54
    s_cbranch_scc0 L_side_next
    s_mul_i32 s35, s34, {32 * 1280}
    s_lshl_b32 s53, {s(S_W)}, 2
    s_add_u32 s53, s53, {s(S_W)}
    s_lshl_b32 s53, s53, 10
    s_mov_b32 m0, s53
    s_nop 0
    """)
    for i in range(5):
        A(f"buffer_load_dwordx4 {v(20 + i)}, s[4:7], s35 offen lds")
        if i < 4: A("s_add_u32 s53, s53, 1024\ns_mov_b32 m0, s53\ns_nop 0")
    A(f"""
    s_mul_i32 s54, {s(S_W)}, 54
    s_add_u32 s54, s54, s34
    s_mul_i32 s54, s54, 5120
    s_add_u32 s54, s54, {WDF}
    s_mov_b32 s55, 0
    s_branch L_side_tr
    L_side_wo:
    s_lshl_b32 s34, {s(J)}, 1
    s_add_u32 s34, s34, s33
    s_sub_u32 s34, s34, 4
    s_mul_i32 s35, s34, {20 * 1280}
    s_lshl_b32 s53, {s(S_W)}, 2
    s_add_u32 s53, s53, {s(S_W)}
    s_lshl_b32 s53, s53, 10
    s_mov_b32 m0, s53
    s_nop 0
    """)
    for i in range(5):
        A(f"buffer_load_dwordx4 {v(20 + i)}, s[8:11], s35 offen lds")
        if i < 4: A("s_add_u32 s53, s53, 1024\ns_mov_b32 m0, s53\ns_nop 0")
    A(f"""
    s_lshl_b32 s54, s34, 3
    s_add_u32 s54, s54, {s(S_W)}
    s_mul_i32 s54, s54, 5120
    s_add_u32 s54, s54, {WOF}
    s_mov_b32 s55, 1
    L_side_tr:
    s_waitcnt vmcnt(0)
    s_barrier
    """)
    for n in range(5):
        for p in range(2):
            A(f"ds_read_b64_tr_b16 {v(32 + 4 * n + 2 * p, 2)}, {v(26 + n)} offset:{4 * p * 1280}")
    A("s_waitcnt lgkmcnt(0)\ns_cmp_eq_u32 s55, 0\ns_cbranch_scc1 L_side_store")
    for n in range(5):
        for q in range(4):
            m = "s[64:65]" if q < 2 else "s[66:67]"
            A(f"v_cndmask_b32 {v(32 + 4 * n + q)}, 0, {v(32 + 4 * n + q)}, {m}")
    A.label("L_side_store")
    for n in range(5):
        A(f"buffer_store_dwordx4 {v(32 + 4 * n, 4)}, v31, s[12:15], s54 offen offset:0{ST}" if n == 0 else
          f"s_add_u32 s54, s54, 1024\nbuffer_store_dwordx4 {v(32 + 4 * n, 4)}, v31, s[12:15], s54 offen{ST}")
    A("s_barrier")
    A.label("L_side_next")
    A("s_add_u32 s33, s33, 1\ns_cmp_lt_u32 s33, 6\ns_cbranch_scc1 L_side_job")

def gen_k1(A, csmode="full"):
    A(f".globl {KN}\n.p2align 8\n.type {KN},@function\n{KN}:")
    A(f"""
    s_cmp_ge_u32 s2, 256
    s_cbranch_scc1 L_k1_end
    """)
    Prof.stamp(A, 0, real=True); Prof.stamp(A, 1)
    A(f"""
    s_load_dwordx4 s[36:39], s[0:1], 0
    s_load_dwordx4 s[40:43], s[0:1], 32
    s_load_dwordx4 s[44:47], s[0:1], 64
    v_and_b32 {v(V_L)}, 63, v0
    v_lshrrev_b32 v2, 6, v0
    s_nop 0
    v_readfirstlane_b32 {s(S_W)}, v2
    s_waitcnt lgkmcnt(0)
    s_mov_b32 s12, s46
    s_mov_b32 s13, s47
    s_mov_b32 s14, {WS_USED}
    s_mov_b32 s15, 0x20000
    s_mov_b32 s16, s44
    s_mov_b32 s17, s45
    s_and_b32 s32, s2, 6
    s_cmp_eq_u32 s32, 6
    s_cbranch_scc0 L_k1_main
    s_cmp_lt_u32 s2, 64
    s_cbranch_scc1 L_k1_side
    L_k1_main:
    """)
    setup_main(A)
    A(f"""
    s_cmp_lg_u32 {s(S_TYPE)}, 0
    s_cselect_b32 s53, 1, 0
    s_lshr_b32 s54, {s(S_W)}, 2
    s_and_b32 s53, s53, s54
    s_cmp_eq_u32 s53, 1
    s_cbranch_scc1 L_k1_b2
    """)
    first_reads(A, 3)
    main_loop(A, 3, csmode)
    epi_common(A, csmode)
    A(f"s_cmp_eq_u32 {s(S_TYPE)}, 1\ns_cbranch_scc1 L_k1_q3\ns_cmp_eq_u32 {s(S_TYPE)}, 2\ns_cbranch_scc1 L_k1_kv3")
    def end():
        Prof.flush(A, 10, s(S_W), 6); A("s_endpgm")
    epi_gu(A, csmode)
    end()
    A.label("L_k1_q3"); epi_q(A, csmode, 3); end()
    A.label("L_k1_kv3"); epi_kv(A, csmode, 3); A("s_branch L_k1_kvtail")
    A.label("L_k1_b2")
    first_reads(A, 2)
    main_loop(A, 2, csmode)
    epi_common(A, csmode)
    A(f"s_cmp_eq_u32 {s(S_TYPE)}, 2\ns_cbranch_scc1 L_k1_kv2")
    epi_q(A, csmode, 2); end()
    A.label("L_k1_kv2"); epi_kv(A, csmode, 2)
    A.label("L_k1_kvtail"); Prof.stamp(A, 5); epi_kv_tail(A); end()
    A.label("L_k1_side"); side(A); end()
    A.label("L_k1_end")
    A("s_endpgm")
```

```python
from asmlib import Asm, v, a, s, Prof
from common import *

KN = "k2_kernel"
DUMMY = 0
THREADS = 256
VGPRS = 512
ACCUM = 256
RED = 0
ZL = 61440
IMG = ZL + 2048
LDS_BYTES = IMG + 2048

S_W = 3; S_RB = 18; S_NB = 19; S_H = 20; S_WD = 21; S_CNT = 22; S_REM = 23; S_T1 = 24; S_T2 = 25; S_BIG = 26
V_L = 1; V_A = 2; V_B = 3
V_X = 20
PQ = 32; ACC = 112; TMP = 192
NSLOT = 6
def pq(k, T): return PQ + (k * 4 + T) * 4
def acc(T, nt): return ACC + (T * 5 + nt) * 4
def hb(p, T): return 36 * p + 4 * T
def wa(p, nt): return 36 * p + 16 + 4 * nt

def ld5(dst, sreg, srd="s[12:15]", extra=""):
    L = []
    for nt in range(5):
        if nt < 4: L.append(f"buffer_load_dwordx4 {dst(nt)}, {v(V_A)}, {srd}, {sreg} offen offset:{1024 * nt}{extra}")
        else: L.append(f"buffer_load_dwordx4 {dst(nt)}, {v(V_B)}, {srd}, {sreg} offen{extra}")
    return L

def stage_loads(p):
    L = ld5(lambda nt: a(wa(p, nt), 4), s(S_T2))
    for T in range(4):
        L.append(f"buffer_load_dwordx4 {a(hb(p, T), 4)}, {v(V_A)}, s[12:15], {s(S_T1)} offen offset:{1024 * T}")
    return L

def stage_ptrs(A):
    A(f"""
    s_cmp_gt_i32 {s(S_REM)}, 0
    s_cselect_b32 {s(S_T1)}, {s(S_H)}, {s(S_BIG)}
    s_cselect_b32 {s(S_T2)}, {s(S_WD)}, {s(S_BIG)}
    s_add_u32 {s(S_H)}, {s(S_H)}, 4096
    s_add_u32 {s(S_WD)}, {s(S_WD)}, 5120
    s_sub_u32 {s(S_REM)}, {s(S_REM)}, 1
    """)

def issue_stage(A, p):
    stage_ptrs(A)
    for x in stage_loads(p): A(x)

def gen_k2(A):
    L = V_L
    A(f".globl {KN}\n.p2align 8\n.type {KN},@function\n{KN}:")
    A("s_cmp_ge_u32 s2, 256\ns_cbranch_scc1 L_k2_end")
    Prof.stamp(A, 0, real=True); Prof.stamp(A, 1)
    for i in range(DUMMY): A(f"s_mov_b32 s90, {0x12345600 + (i & 255)}")
    A(f"""
    s_load_dwordx2 s[36:37], s[0:1], 0
    s_load_dwordx2 s[38:39], s[0:1], 56
    s_load_dwordx4 s[44:47], s[0:1], 64
    v_and_b32 {v(L)}, 63, v0
    v_lshrrev_b32 v4, 6, v0
    v_lshlrev_b32 {v(V_A)}, 4, {v(L)}
    v_readfirstlane_b32 {s(S_W)}, v4
    v_add_u32 {v(V_B)}, 4096, {v(V_A)}
    s_and_b32 s32, s2, 7
    s_lshr_b32 s33, s2, 3
    s_and_b32 s34, s32, 1
    s_lshl_b32 {s(S_RB)}, s34, 4
    s_bfe_u32 s34, s32, 0x10001
    s_lshl_b32 s34, s34, 3
    s_add_u32 {s(S_RB)}, {s(S_RB)}, s34
    s_and_b32 s34, s33, 7
    s_add_u32 {s(S_RB)}, {s(S_RB)}, s34
    s_lshr_b32 s34, s32, 2
    s_lshl_b32 {s(S_NB)}, s34, 2
    s_lshr_b32 s34, s33, 3
    s_add_u32 {s(S_NB)}, {s(S_NB)}, s34
    s_mov_b32 {s(S_BIG)}, 0x7f000000
    s_mul_i32 s34, {s(S_W)}, 14
    s_mul_i32 {s(S_H)}, {s(S_RB)}, 54
    s_add_u32 {s(S_H)}, {s(S_H)}, s34
    s_lshl_b32 {s(S_H)}, {s(S_H)}, 12
    s_mul_i32 {s(S_WD)}, {s(S_NB)}, 54
    s_add_u32 {s(S_WD)}, {s(S_WD)}, s34
    s_mul_i32 {s(S_WD)}, {s(S_WD)}, 5120
    s_add_u32 {s(S_WD)}, {s(S_WD)}, {WDF}
    s_cmp_eq_u32 {s(S_W)}, 3
    s_cselect_b32 {s(S_CNT)}, 12, 14
    s_mov_b32 {s(S_REM)}, {s(S_CNT)}
    s_waitcnt lgkmcnt(0)
    s_mov_b32 s12, s46
    s_mov_b32 s13, s47
    s_mov_b32 s14, {WS_USED}
    s_mov_b32 s15, 0x20000
    s_mov_b32 s16, s44
    s_mov_b32 s17, s45
    s_mov_b32 s8, s36
    s_mov_b32 s9, s37
    s_mov_b32 s10, {X_BYTES}
    s_mov_b32 s11, 0x20000
    s_mov_b32 s4, s38
    s_mov_b32 s5, s39
    s_mov_b32 s6, {X_BYTES}
    s_mov_b32 s7, 0x20000
    s_cmp_eq_u32 {s(S_W)}, 3
    s_cbranch_scc0 L_k2_z
    """)
    KV0 = 32; WO = 160
    A(f"""
    s_lshr_b32 s40, s2, 3
    s_and_b32 s41, s2, 7
    s_mul_i32 s42, s40, {16 * KVP_BLK}
    s_add_u32 s42, s42, {KVP}
    v_add_u32 v4, 1024, {v(V_A)}
    """)
    for rb in range(16):
        A(f"buffer_load_dwordx4 {v(KV0 + 8 * rb, 4)}, {v(V_A)}, s[12:15], s42 offen")
        A(f"buffer_load_dwordx4 {v(KV0 + 8 * rb + 4, 4)}, v4, s[12:15], s42 offen")
        if rb < 15: A(f"s_add_u32 s42, s42, {KVP_BLK}")
    A(f"""
    s_lshl_b32 s42, s40, 3
    s_add_u32 s42, s42, s41
    s_mul_i32 s42, s42, 5120
    s_add_u32 s42, s42, {WOF}
    """)
    for x in ld5(lambda nt: v(WO + 4 * nt, 4), "s42"): A(x)
    A.label("L_k2_z")
    A(f"""
    v_cmp_gt_u32 vcc, 40, {v(L)}
    v_mov_b32 v5, {s(S_BIG)}
    s_mul_i32 s34, {s(S_W)}, 640
    s_add_u32 s34, s34, {ZP}
    v_cndmask_b32 v5, v5, {v(V_A)}, vcc
    """)
    for rb in range(16):
        A(f"buffer_load_dwordx4 {v(TMP + 4 * rb, 4)}, v5, s[12:15], s34 offen")
        if rb < 15: A("s_add_u32 s34, s34, 2560")
    A(f"s_cmp_eq_u32 {s(S_W)}, 3\ns_cbranch_scc0 L_k2_pq")
    A(f"""
    v_mov_b32 v8, 0
    v_mov_b32 v9, 0
    v_mov_b32 v10, 0
    v_mov_b32 v11, 0
    v_lshlrev_b32 v6, 5, {v(L)}
    v_add_u32 v6, {IMG}, v6
    ds_write_b128 v6, v[8:11]
    ds_write_b128 v6, v[8:11] offset:16
    """)
    for h in range(2):
        A(f"""
        v_add_u32 v6, {64 * h}, {v(L)}
        v_mul_u32_u24 v7, 205, v6
        v_lshrrev_b32 v7, 10, v7
        v_mul_u32_u24 v12, 5, v7
        v_sub_u32 v6, v6, v12
        v_lshlrev_b32 v6, 3, v6
        v_lshl_add_u32 v6, v7, 6, v6
        v_add_u32 {v(14 + h)}, {IMG}, v6
        """)
    A(f"""
    v_lshrrev_b32 v6, 4, {v(L)}
    v_bfe_u32 v7, {v(L)}, 2, 2
    v_lshl_add_u32 v6, v6, 3, v7
    v_lshlrev_b32 v6, 6, v6
    v_and_b32 v7, 3, {v(L)}
    v_lshl_add_u32 v6, v7, 3, v6
    v_add_u32 v16, {IMG}, v6
    s_waitcnt vmcnt(21)
    """)
    for step in (8, 4, 2, 1):
        for rb in range(step):
            for q in range(8):
                A(f"v_add_f32 {v(KV0 + 8 * rb + q)}, {v(KV0 + 8 * rb + q)}, {v(KV0 + 8 * (rb + step) + q)}")
    for q in range(4):
        A(f"v_cvt_pk_bf16_f32 {v(8 + q)}, {v(KV0 + 2 * q)}, {v(KV0 + 2 * q + 1)}")
    A(f"""
    ds_write_b64 v14, v[8:9]
    v_cmp_gt_u32 vcc, 36, {v(L)}
    s_and_saveexec_b64 s[56:57], vcc
    ds_write_b64 v15, v[10:11]
    s_mov_b64 exec, s[56:57]
    s_waitcnt lgkmcnt(0)
    """)
    for tile in range(2):
        for p in range(2):
            A(f"ds_read_b64_tr_b16 {v(32 + 4 * tile + 2 * p, 2)}, v16 offset:{256 * p + 32 * tile}")
    A(f"""
    s_lshr_b32 s49, s40, 3
    s_bfe_u32 s50, s40, 0x20001
    s_and_b32 s51, s40, 1
    s_mul_i32 s51, s51, 20
    s_mul_i32 s52, s41, 20
    s_mul_i32 s49, s49, 5
    s_add_u32 s52, s52, s49
    s_mul_i32 s52, s52, 5120
    s_lshl_b32 s50, s50, 8
    s_add_u32 s52, s52, s50
    s_add_u32 s52, s52, {MF}
    v_lshrrev_b32 v6, 4, {v(L)}
    v_lshl_add_u32 v6, v6, 2, s51
    v_and_b32 v7, 15, {v(L)}
    v_lshlrev_b32 v7, 4, v7
    v_lshrrev_b32 v12, 3, v6
    v_mul_u32_u24 v12, 5120, v12
    v_and_b32 v6, 7, v6
    v_lshl_add_u32 v12, v6, 1, v12
    v_add_u32 v17, v12, v7
    s_add_u32 s51, s51, 16
    s_lshr_b32 s53, s51, 3
    s_mul_i32 s53, s53, 5120
    s_and_b32 s51, s51, 7
    s_lshl_b32 s51, s51, 1
    s_add_u32 s53, s53, s51
    v_add_u32 v18, s53, v7
    v_mov_b32 v6, {s(S_BIG)}
    v_cmp_gt_u32 vcc, 16, {v(L)}
    s_waitcnt vmcnt(16) lgkmcnt(0)
    s_nop 0
    v_cndmask_b32 v18, v6, v18, vcc
    """)
    DM = 48
    for tile in range(2):
        for nt in range(5):
            A(f"v_mfma_f32_16x16x32_bf16 {v(DM + (tile * 5 + nt) * 4, 4)}, {v(32 + 4 * tile, 4)}, {v(WO + 4 * nt, 4)}, 0")
    A("s_nop 7")
    for tile in range(2):
        for nt in range(5):
            d = DM + (tile * 5 + nt) * 4
            A(f"v_cvt_pk_bf16_f32 {v(d)}, {v(d)}, {v(d + 1)}\nv_cvt_pk_bf16_f32 {v(d + 1)}, {v(d + 2)}, {v(d + 3)}")
    for tile in range(2):
        for nt in range(5):
            d = DM + (tile * 5 + nt) * 4
            if nt == 4: A("s_add_u32 s53, s52, 4096")
            so = "s52" if nt < 4 else "s53"
            off = f" offset:{1024 * nt}" if nt < 4 else ""
            A(f"buffer_store_dwordx2 {v(d, 2)}, {v(17 + tile)}, s[12:15], {so} offen{off} sc1")
    A(f"""
    s_waitcnt vmcnt(0)
    s_lshl_b32 s53, s41, 2
    v_mov_b32 v6, s53
    v_mov_b32 v7, 1
    s_mov_b64 exec, 1
    global_atomic_add v6, v7, s[16:17] sc1
    s_mov_b64 exec, -1
    """)
    A.label("L_k2_pq")
    Prof.stamp(A, 2)
    A(f"""
    s_mul_i32 s34, {s(S_RB)}, 20
    s_mul_i32 s35, {s(S_W)}, 5
    s_add_u32 s34, s34, s35
    s_lshl_b32 s34, s34, 12
    s_add_u32 s34, s34, {PQF}
    """)
    for k in range(5):
        for T in range(4):
            A(f"buffer_load_dwordx4 {v(pq(k, T), 4)}, {v(V_A)}, s[12:15], s34 offen offset:{1024 * T}")
        if k < 4: A("s_add_u32 s34, s34, 4096")
    for p in range(3): issue_stage(A, p)
    A(f"""
    v_lshlrev_b32 v6, 3, {v(L)}
    s_lshl_b32 s34, {s(S_W)}, 9
    s_add_u32 s34, s34, {ZL}
    v_add_u32 v6, s34, v6
    v_lshrrev_b32 v7, 4, {v(L)}
    v_mul_u32_u24 v8, 80, v7
    v_add_u32 v8, s34, v8
    s_waitcnt vmcnt(47)
    """)
    for step in (8, 4, 2, 1):
        for rb in range(step):
            for q in range(4):
                A(f"v_add_f32 {v(TMP + 4 * rb + q)}, {v(TMP + 4 * rb + q)}, {v(TMP + 4 * (rb + step) + q)}")
    A(f"""
    v_cvt_pk_bf16_f32 v10, {v(TMP)}, {v(TMP + 1)}
    v_cvt_pk_bf16_f32 v11, {v(TMP + 2)}, {v(TMP + 3)}
    ds_write_b64 v6, v[10:11]
    """)
    issue_stage(A, 3)
    A("s_waitcnt lgkmcnt(0)")
    ZF = TMP + 16
    for k in range(5):
        A(f"ds_read_b128 {v(ZF + 4 * k, 4)}, v8 offset:{16 * k}")
    A(f"""
    v_bfe_u32 v9, {v(L)}, 2, 2
    v_cmp_eq_u32 s[56:57], v9, v7
    v_and_b32 v9, 3, {v(L)}
    v_cmp_eq_u32 s[58:59], 0, v9
    v_cmp_eq_u32 s[60:61], 1, v9
    """)
    for r in range(ACC, ACC + 80):
        A(f"v_mov_b32 {v(r)}, 0")
    A(f"""
    s_and_b64 s[58:59], s[58:59], s[56:57]
    s_and_b64 s[60:61], s[60:61], s[56:57]
    s_waitcnt lgkmcnt(0)
    """)
    for k in range(5):
        for r in range(4):
            hh = 0 if k < 2 else (1 if k > 2 else (0 if r < 2 else 1))
            A(f"v_cndmask_b32 {v(ZF + 4 * k + r)}, 0, {v(ZF + 4 * k + r)}, {'s[58:59]' if hh == 0 else 's[60:61]'}")
    A("s_waitcnt vmcnt(36)")
    issue_stage(A, 4); issue_stage(A, 5)
    DEN = TMP + 40
    for k in range(5):
        for T in range(4):
            c = "0" if k == 0 else v(DEN + 4 * T, 4)
            A(f"v_mfma_f32_16x16x32_bf16 {v(DEN + 4 * T, 4)}, {v(ZF + 4 * k, 4)}, {v(pq(k, T), 4)}, {c}")
    A(f"s_mov_b32 s34, {hex(0x358637bd)}\ns_nop 6")
    for T in range(4):
        for hh in range(2):
            A(f"v_add_f32 {v(DEN + 4 * T + hh)}, s34, {v(DEN + 4 * T + hh)}")
    for T in range(4):
        for hh in range(2):
            A(f"v_rcp_f32 {v(DEN + 4 * T + hh)}, {v(DEN + 4 * T + hh)}")
    A("s_mov_b32 s35, 0xffff0000")
    TT = TMP
    for k in range(5):
        for T in range(4):
            r0 = pq(k, T)
            for r in range(4):
                A(f"v_lshlrev_b32 {v(TT + 2 * r)}, 16, {v(r0 + r)}\nv_and_b32 {v(TT + 2 * r + 1)}, s35, {v(r0 + r)}")
            for r in range(4):
                hh = 0 if k < 2 else (1 if k > 2 else (0 if r < 2 else 1))
                sel = "op_sel_hi:[1,0]" if hh == 0 else "op_sel:[0,1] op_sel_hi:[1,1]"
                A(f"v_pk_mul_f32 {v(TT + 2 * r, 2)}, {v(TT + 2 * r, 2)}, {v(DEN + 4 * T, 2)} {sel}")
            for r in range(4):
                A(f"v_cvt_pk_bf16_f32 {v(r0 + r)}, {v(TT + 2 * r)}, {v(TT + 2 * r + 1)}")
    Prof.stamp(A, 3)
    A.label("L_k2_loop")
    for p in range(NSLOT):
        A("s_waitcnt vmcnt(45)")
        stage_ptrs(A)
        ld = stage_loads(p)
        for nt in range(5):
            for T in range(4):
                A(f"v_mfma_f32_16x16x32_bf16 {v(acc(T, nt), 4)}, {a(wa(p, nt), 4)}, {a(hb(p, T), 4)}, {v(acc(T, nt), 4)}")
            A(ld[nt])
        for x in ld[5:]: A(x)
        A(f"s_sub_u32 {s(S_CNT)}, {s(S_CNT)}, 1")
        if p in (1, 5):
            A(f"s_cmp_eq_u32 {s(S_CNT)}, 0\ns_cbranch_scc1 L_k2_hdone")
    A("s_branch L_k2_loop")
    A.label("L_k2_hdone")
    Prof.stamp(A, 4)
    A(f"""
    v_and_b32 v6, 15, {v(L)}
    s_lshl_b32 s34, {s(S_RB)}, 6
    s_lshl_b32 s35, {s(S_W)}, 4
    s_add_u32 s34, s34, s35
    v_add_u32 v6, s34, v6
    v_mul_u32_u24 v6, 1280, v6
    v_lshrrev_b32 v7, 4, {v(L)}
    v_lshl_add_u32 v6, v7, 3, v6
    s_mul_i32 s34, {s(S_NB)}, 160
    v_add_u32 v30, s34, v6
    s_lshl_b32 s34, {s(S_NB)}, 2
    v_mov_b32 v9, s34
    s_waitcnt vmcnt(0)
    """)
    for nt in range(5):
        A(f"buffer_load_dwordx2 {v(V_X + 2 * nt, 2)}, v30, s[8:11], 0 offen offset:{32 * nt}")
    A(f"""
    L_k2_poll:
    global_load_dword v10, v9, s[16:17] sc1
    s_waitcnt vmcnt(0)
    v_readfirstlane_b32 s34, v10
    s_nop 1
    s_cmp_ge_u32 s34, 32
    s_cbranch_scc0 L_k2_poll
    s_mul_i32 s34, {s(S_NB)}, 20
    s_mul_i32 s35, {s(S_W)}, 5
    s_add_u32 s34, s34, s35
    s_mul_i32 s34, s34, 5120
    s_add_u32 s34, s34, {MF}
    """)
    Prof.stamp(A, 5)
    for k in range(5):
        for x in ld5(lambda nt: a(wa(k, nt), 4), "s34", extra=" sc1"): A(x)
        if k < 4: A("s_add_u32 s34, s34, 5120")
    for k in range(5):
        A(f"s_waitcnt vmcnt({20 - 5 * k})")
        for nt in range(5):
            for T in range(4):
                A(f"v_mfma_f32_16x16x32_bf16 {v(acc(T, nt), 4)}, {a(wa(k, nt), 4)}, {v(pq(k, T), 4)}, {v(acc(T, nt), 4)}")
    Prof.stamp(A, 8)
    A(f"""
    s_nop 7
    """)
    for T in range(4):
        lab = A.uid("L_red")
        A(f"""
        s_cmp_eq_u32 {s(S_W)}, {T}
        s_cbranch_scc1 {lab}
        s_sub_u32 s34, {s(S_W)}, {T + 1}
        s_and_b32 s34, s34, 3
        s_mul_i32 s34, s34, 5120
        s_add_u32 s34, s34, {RED + T * 15360}
        v_add_u32 v6, s34, {v(V_A)}
        """)
        for nt in range(5):
            A(f"ds_write_b128 v6, {v(acc(T, nt), 4)} offset:{1024 * nt}")
        A.label(lab)
    for T in range(4):
        lab = A.uid("L_own")
        A(f"s_cmp_eq_u32 {s(S_W)}, {T}\ns_cbranch_scc0 {lab}")
        for r in range(20):
            A(f"v_mov_b32 {v(TMP + r)}, {v(acc(T, 0) + r)}")
        A.label(lab)
    A(f"""
    s_mul_i32 s34, {s(S_W)}, 15360
    s_add_u32 s34, s34, {RED}
    v_add_u32 v6, s34, {v(V_A)}
    s_waitcnt lgkmcnt(0)
    s_barrier
    """)
    for u in range(3):
        for nt in range(5):
            A(f"ds_read_b128 {v(PQ + (u * 5 + nt) * 4, 4)}, v6 offset:{(u * 5 + nt) * 1024}")
    A("s_mov_b32 s35, 0xffff0000")
    for u in range(3):
        A(f"s_waitcnt lgkmcnt({10 - 5 * u})")
        for r in range(20):
            A(f"v_add_f32 {v(TMP + r)}, {v(TMP + r)}, {v(PQ + u * 20 + r)}")
    for nt in range(5):
        x0, x1 = V_X + 2 * nt, V_X + 2 * nt + 1
        t = TMP + 4 * nt
        A(f"""
        v_lshlrev_b32 v6, 16, {v(x0)}
        v_and_b32 v7, s35, {v(x0)}
        v_lshlrev_b32 v8, 16, {v(x1)}
        v_and_b32 v9, s35, {v(x1)}
        v_add_f32 {v(t)}, {v(t)}, v6
        v_add_f32 {v(t + 1)}, {v(t + 1)}, v7
        v_add_f32 {v(t + 2)}, {v(t + 2)}, v8
        v_add_f32 {v(t + 3)}, {v(t + 3)}, v9
        v_cvt_pk_bf16_f32 {v(t)}, {v(t)}, {v(t + 1)}
        v_cvt_pk_bf16_f32 {v(t + 1)}, {v(t + 2)}, {v(t + 3)}
        buffer_store_dwordx2 {v(t, 2)}, v30, s[4:7], 0 offen offset:{32 * nt}
        """)
    Prof.flush(A, 10, s(S_W), 6, base=0x1480000)
    if Prof.on:
        A(f"""
        s_cmp_lg_u32 s2, 0
        s_cbranch_scc1 L_k2_end
        s_cmp_lg_u32 {s(S_W)}, 0
        s_cbranch_scc1 L_k2_end
        s_mov_b32 s70, 0x1400000
        buffer_load_dword v2, v1, s[12:15], s70 offen sc1
        buffer_load_dword v3, v1, s[12:15], s70 offen offset:28 sc1
        s_waitcnt vmcnt(0)
        v_sub_u32 v4, s86, v2
        v_sub_u32 v5, s72, v2
        v_sub_u32 v6, v3, v2
        v_mov_b32 v7, 32
        global_store_dword v7, v4, s[16:17]
        global_store_dword v7, v5, s[16:17] offset:4
        global_store_dword v7, v6, s[16:17] offset:8
        s_waitcnt vmcnt(0)
        """)
    A.label("L_k2_end")
    A("s_endpgm")
```

```python
import sys
from asmlib import Asm, check_hazards, Prof
from common import *
import k1

def header(launches):
    h = open('cdna_kernels/' + NAME + '.s.ref').read().split('\n')
    out = []
    for ln in h:
        if ln.startswith('; @launch') or ln.startswith('; Override') or ln.startswith('; grid='): continue
        if not ln.startswith(';'): break
        out.append(ln)
    for k, g, b, lds in launches:
        out.append(f"; @launch kernel={k} grid=({g},1,1) block=({b},1,1) lds={lds}")
    return "\n".join(out) + "\n"

def build(path, kernels=("k1",), csmode="full"):
    A = Asm()
    A('.amdgcn_target "amdgcn-amd-amdhsa--gfx950"\n.text')
    launches, descs = [], []
    if "k1" in kernels:
        k1.gen_k1(A, csmode)
        launches.append((k1.KN, 256, 512, k1.LDS_BYTES))
        descs.append(kernel_desc(k1.KN, 256, 96))
    if "k2" in kernels:
        import k2
        k2.gen_k2(A)
        launches.append((k2.KN, 256, k2.THREADS, k2.LDS_BYTES))
        descs.append(kernel_desc(k2.KN, k2.VGPRS, 96, k2.ACCUM))
        for _ in range(list(kernels).count("k2") - 1):
            launches.append((k2.KN, 256, k2.THREADS, k2.LDS_BYTES))
    for i, kk in enumerate(kernels):
        if kk.startswith("e"):
            nm = f"empty{i}_kernel"
            A(f".globl {nm}\n.p2align 8\n.type {nm},@function\n{nm}:\ns_endpgm")
            launches.insert(i, (nm, int(kk[1:] or 256), 64, 0))
            descs.append(kernel_desc(nm, 8, 16))
    probs = check_hazards(A.lines)
    for p in probs: print("HAZARD", p)
    txt = header(launches) + A.text() + '.section .rodata,"a"\n.p2align 6\n' + "\n.p2align 6\n".join(descs)
    open(path, "w").write(txt)
    return probs

if __name__ == "__main__":
    opts = sys.argv[3:]
    if "prof" in opts:
        Prof.on = True; opts.remove("prof")
    for o in list(opts):
        if o.startswith("dummy"):
            import k2; k2.DUMMY = int(o[5:]); opts.remove(o)
    if "sc1" in opts:
        k1.ST = " sc1"; opts.remove("sc1")
    if "exp16" in opts:
        k1.EXP16 = True; opts.remove("exp16")
    build(sys.argv[1], tuple(sys.argv[2].split(",")), *opts)
```

```python
NAME = "parallel_sum__linear_attn_block__glu_gated_bilinear__prompt"
HF   = 0x0000000
PQF  = 0x0700000
WDF  = 0x0A00000
KVP  = 0x0F00000
STAT = 0x1000000
CSP  = 0x1200000
ZB   = 0x1050000
WOF  = 0x0D00000
F1   = 0x1060000
FW   = 0x1068000
F2   = 0x1070000
MF   = 0x1100000
WS_USED = 0x1300000
KVP_BLK = 1792

X_BYTES   = 2048 * 640 * 2
WQKV_BYTES = 640 * 1920 * 2
WO_BYTES  = 640 * 640 * 2
WG_BYTES  = 640 * 1728 * 2
WD_BYTES  = 1728 * 640 * 2

def kernel_desc(name, vgpr, sgpr, accum=None):
    if accum is None: accum = (vgpr + 3) // 4 * 4
    return f""".amdhsa_kernel {name}
  .amdhsa_next_free_vgpr {vgpr}
  .amdhsa_next_free_sgpr {sgpr}
  .amdhsa_accum_offset {accum}
  .amdhsa_group_segment_fixed_size 0
  .amdhsa_kernarg_size 80
  .amdhsa_user_sgpr_count 2
  .amdhsa_user_sgpr_kernarg_segment_ptr 1
  .amdhsa_system_sgpr_workgroup_id_x 1
  .amdhsa_float_denorm_mode_32 3
.end_amdhsa_kernel
"""
```

```python
from asmlib import Asm, v, a, s, Prof
from common2 import *

ST = " sc1"
WSLOT = 24832
SEGB = 12288 + 128
XBASE = 4 * WSLOT
XSLOT = 16384
CSB = XBASE + 3 * XSLOT
LDS_BYTES = 163840
LFL = LDS_BYTES - 256
ROLES = 0xF876AE549D32CB10

V_L = 1
V_CS = 92; V_DX = 98; V_WR = 100; V_XR = 104; V_DW = 108; V_WF = 112; V_XF = 136; V_ACC = 160
V_WR2 = 152
V_L16 = 155
V_PL = 52
V_ROW = 32

S_W = 3; S_RB = 20; S_CIDX = 21; S_TYPE = 22; S_C = 23
S_WSO = 24; S_WSTEP = 25; S_WDST = 26; S_CSO = 27; S_XDST = 28; S_XWRAP = 29; S_STO = 30; S_IT = 31
S_WWRAP = 48; S_T = 49; S_SH = 50; S_TB = 51; S_ONES = 52; S_XD = 53; S_XSTEP = 54
S_WSO2 = 55; S_XD2 = 56; S_DUTY = 57; S_R = 58; S_N = 59; S_B = 66; S_P = 67
PRELOAD = True

def acc(T, t): return V_ACC + (T * 3 + t) * 16
def wf(st, t): return V_WF + st * 12 + t * 4
def xf(st, T): return V_XF + st * 8 + T * 4
def rng(b, n): return range(b, b + n)

class LQ:
    def __init__(self, A): self.A = A; self.q = []
    def issue(self, text, regs):
        self.A(text); self.q.append(set(regs))
    def need(self, regs):
        regs = set(regs); last = -1
        for i, r in enumerate(self.q):
            if r & regs: last = i
        if last >= 0:
            self.A(f"s_waitcnt lgkmcnt({len(self.q) - 1 - last})")
            self.q = self.q[last + 1:]
    def drain(self): self.q = []

def reads_for(b, st, j, k2):
    R = []
    it, P = j >> 1, j & 1
    kap = 2 * P + k2
    for T in range(2):
        R.append((f"ds_read_b128 {v(xf(st, T), 4)}, {v(V_XR + kap)} offset:{(it % 3) * XSLOT + T * 4096}", rng(xf(st, T), 4)))
    sg = j % 4
    base = V_WR if sg < 2 else V_WR2
    for t in range(b):
        for p in range(2):
            off = (sg & 1) * WSLOT + (16 * k2 + 4 * p) * 384
            R.append((f"ds_read_b64_tr_b16 {v(wf(st, t) + 2 * p, 2)}, {v(base + t)} offset:{off}", rng(wf(st, t) + 2 * p, 2)))
    return R

def spread(items, n):
    out, k = [], 0
    for i in range(n):
        m = (len(items) - k + (n - i) - 1) // (n - i)
        out.append(items[k:k + m]); k += m
    return out

def kstep(A, lq, b, st, reads, extra, duty, waits=True):
    mf = [(T, t) for t in range(b) for T in range(2)]
    nr = max(1, len(mf) - 2)
    R = spread(list(reads), nr) + [[]] * (len(mf) - nr)
    E = spread(list(extra), len(mf))
    for n, (T, t) in enumerate(mf):
        if waits:
            lq.need(list(rng(wf(st, t), 4)) + list(rng(xf(st, T), 4)))
        A(f"v_mfma_f32_32x32x16_bf16 {v(acc(T, t), 16)}, {v(wf(st, t), 4)}, {v(xf(st, T), 4)}, {v(acc(T, t), 16)}")
        for r in R[n]: lq.issue(*r)
        for e in E[n]:
            e() if callable(e) else A(e)
    if duty is not None:
        lab = A.uid("L_cs")
        A(f"s_cmp_lg_u32 {s(S_DUTY)}, {duty}\ns_cbranch_scc1 {lab}")
        for t in range(b):
            for j in range(4):
                A(f"v_dot2c_f32_bf16 {v(V_CS + t)}, {s(S_ONES)}, {v(wf(st, t) + j)}")
        A.label(lab)

def dma_batch(j):
    it, P = j >> 1, j & 1
    L = []
    L.append(f"s_add_u32 m0, {s(S_WDST)}, {(j % 4) * WSLOT}\ns_nop 0")
    for q in range(3):
        L.append(f"buffer_load_dwordx4 {v(V_DW + q)}, {s(4, 4)}, {s(S_WSO)} offen offset:{1024 * q} lds")
    g, half = (it + 2, 1) if P == 0 else (it + 3, 0)
    L.append(f"s_add_u32 m0, {s(S_XDST)}, {(g % 3) * XSLOT + half * 1024}\ns_add_u32 {s(S_WSO)}, {s(S_WSO)}, {s(S_WSTEP)}")
    L.append(f"buffer_load_dwordx4 {v(V_DX + half)}, {s(8, 4)}, {s(S_XD)} offen lds")
    if P == 0:
        L.append(f"s_add_u32 {s(S_XD)}, {s(S_XD)}, {s(S_XSTEP)}")
    if j == 19 and PRELOAD:
        L.append(f"s_add_u32 m0, {s(S_XDST)}, 1024\ns_nop 0")
        L.append(f"buffer_load_dwordx4 {v(V_DX + 1)}, {s(8, 4)}, {s(S_XD)} offen lds")
    return L

LPROF = False
def lstamp(A, it, k):
    if not LPROF: return
    A(f"s_memtime s[90:91]\ns_waitcnt lgkmcnt(0)\nv_writelane_b32 v95, s90, {2 * it + k}")

def lflush(A):
    if not LPROF: return
    A(f"""
    s_lshl_b32 s70, s2, 3
    s_add_u32 s70, s70, s3
    s_lshl_b32 s70, s70, 8
    s_add_u32 s70, s70, 0x1500000
    s_mov_b32 s14, 0x2000000
    v_lshlrev_b32 v0, 2, {v(V_L)}
    buffer_store_dword v95, v0, s[12:15], s70 offen
    """)

def lines(fn):
    B = Asm(); fn(B)
    out, pend, grp = [], "", False
    for ln in B.lines:
        if ln == ";[": grp = True
        elif ln == ";]": grp = False; out.append(pend.rstrip()); pend = ""
        elif grp or ln.endswith(":"): pend += ln + "\n"
        else: out.append(pend + ln); pend = ""
    if pend: out.append(pend.rstrip())
    return out

def main_loop(A, b, slow):
    lq = LQ(A)
    for txt, regs in reads_for(b, 0, 0, 0):
        lq.q.append(set(regs))
    X = {}
    def add(j, h, L): X.setdefault((j, h), []).extend(L)
    st = lines(row_stats)
    n4 = (len(st) + 3) // 4
    add(0, 1, st[:n4]); add(1, 0, st[n4:2 * n4]); add(1, 1, st[2 * n4:3 * n4]); add(2, 0, st[3 * n4:])
    def w0(name, fn):
        B = Asm(); B(f"s_cmp_lg_u32 {s(S_W)}, 0\ns_cbranch_scc1 {name}"); fn(B); B.label(name)
        return ["\n".join(B.lines)]
    for d in range(5):
        def pub(B, d=d):
            lab = f"L_pub{b}_{d}"
            B(f"s_cmp_lg_u32 {s(S_DUTY)}, {d}\ns_cbranch_scc1 {lab}")
            for t in range(3):
                B(f"""
                v_mov_b32 v9, {v(V_CS + t)}
                s_nop 1
                v_permlane32_swap_b32 {v(V_CS + t)}, v9
                s_nop 1
                v_add_f32 v9, v9, {v(V_CS + t)}
                v_or_b32 {v(12 + t)}, 1, v9
                """)
            B(f"""
            v_and_b32 v6, 31, {v(V_L)}
            v_lshlrev_b32 v6, 4, v6
            buffer_store_dwordx3 v[12:14], v6, s[12:15], {s(S_CSO)} offen sc1
            """)
            B.label(lab)
        B = Asm(); pub(B)
        add(2 * d + 2, 1, ["\n".join(B.lines)])
    add(5, 0, [f"s_sub_u32 {s(S_XD)}, {s(S_XD)}, {s(S_XWRAP)}"])
    add(6, 0, [f"s_sub_u32 {s(S_WSO)}, {s(S_WSO)}, {s(S_WWRAP)}"])
    add(10, 1, w0(f"L_ci{b}", lambda B: cnt_issue(B, V_PL)))
    def chk_cnt(B):
        B("s_waitcnt vmcnt(4)")
        check(slow, f"L_cnt{b}", lambda C: cnt_cond(C, V_PL), lambda C: cnt_issue(C, V_PL))(B)
        if PRELOAD: fw_issue(B, V_PL)
    add(12, 0, w0(f"L_cc{b}", chk_cnt))
    if PRELOAD:
        def chk_fw(B):
            B("s_waitcnt vmcnt(12)")
            check(slow, f"L_fw{b}", lambda C: fw_cond(C, V_PL, FW_ALL), lambda C: fw_issue(C, V_PL))(B)
        add(15, 0, w0(f"L_fc{b}", chk_fw))
        add(15, 0, [f"s_mov_b32 {s(S_XD)}, {s(S_XD2)}\ns_mov_b32 {s(S_XSTEP)}, 4096",
                    "s_mov_b32 s8, s12\ns_mov_b32 s9, s13\ns_mov_b32 s10, s14",
                    f"v_mov_b32 {v(V_DX)}, {v(V_L16)}\nv_add_u32 {v(V_DX + 1)}, 1024, {v(V_L16)}"])
        add(16, 0, [f"s_mov_b32 {s(S_WSO)}, {s(S_WSO2)}\ns_mov_b32 {s(S_WSTEP)}, 6144",
                    "s_mov_b32 s4, s12\ns_mov_b32 s5, s13\ns_mov_b32 s6, s14"] +
                   [f"v_mov_b32 {v(V_DW + q)}, {v(V_L16)}" for q in range(3)])
    else:
        add(15, 0, [f"s_mov_b32 {s(S_XD)}, 0x7f000000\ns_mov_b32 {s(S_XSTEP)}, 0"])
        add(16, 0, [f"s_mov_b32 {s(S_WSO)}, 0x7f000000\ns_mov_b32 {s(S_WSTEP)}, 0"])
    el = lines(epi_loads)
    add(18, 0, el[:len(el) // 2]); add(18, 1, el[len(el) // 2:])
    for j in range(20):
        it = j >> 1
        duty = it if it < 5 else None
        kstep(A, lq, b, 0, reads_for(b, 1, j, 1), X.get((j, 0), []), duty)
        A("s_waitcnt vmcnt(8) lgkmcnt(0)" if j < 19 else "s_waitcnt lgkmcnt(0)")
        lq.drain()
        A("s_barrier")
        lstamp(A, it, j & 1)
        nxt = reads_for(b, 0, j + 1, 0) if j < 19 else []
        E = dma_batch(j) + X.get((j, 1), [])
        kstep(A, lq, b, 1, nxt, E, duty, waits=False)

def decode(A):
    A(f"""
    s_and_b32 s32, s2, 7
    s_lshr_b32 s33, s2, 3
    s_and_b32 s34, s32, 1
    s_lshl_b32 {s(S_RB)}, s34, 3
    s_and_b32 s34, s33, 7
    s_add_u32 {s(S_RB)}, {s(S_RB)}, s34
    s_lshr_b32 s34, s32, 1
    s_lshl_b32 s34, s34, 2
    s_lshr_b32 s35, s33, 3
    s_add_u32 s34, s34, s35
    s_lshl_b32 s34, s34, 2
    s_mov_b32 s68, {hex(ROLES & 0xffffffff)}
    s_mov_b32 s69, {hex(ROLES >> 32)}
    s_lshr_b64 s[68:69], s[68:69], s34
    s_and_b32 {s(S_CIDX)}, s68, 15
    s_lshl_b32 {s(S_R)}, s32, 2
    s_and_b32 s34, s33, 3
    s_add_u32 {s(S_R)}, {s(S_R)}, s34
    s_lshr_b32 {s(S_N)}, s33, 2
    s_lshr_b32 {s(S_P)}, {s(S_RB)}, 3
    """)

def zero_and_row(A, side):
    L = V_L
    A(f"""
    s_lshl_b32 s32, s2, 3
    s_add_u32 s32, s32, {s(S_W)}
    s_mul_i32 s70, s32, 1280
    s_lshl_b32 s32, s32, 3
    s_add_u32 s32, s32, {STAT}
    s_add_u32 s33, s32, 4
    s_lshl_b32 s34, {s(S_RB)}, 4
    s_add_u32 s34, s34, {s(S_CIDX)}
    s_lshl_b32 s34, s34, 7
    s_add_u32 s34, s34, {F1}
    s_lshl_b32 s35, {s(S_N)}, 5
    s_add_u32 s35, s35, {s(S_R)}
    s_lshl_b32 s35, s35, 7
    s_add_u32 s35, s35, {F2}
    s_cmp_eq_u32 {s(S_W)}, 0
    s_cselect_b32 s34, s34, s32
    s_cselect_b32 s35, s35, s33
    v_mov_b32 v6, s32
    v_writelane_b32 v6, s33, 1
    v_writelane_b32 v6, s34, 2
    v_writelane_b32 v6, s35, 3
    v_mov_b32 v8, 0
    v_mov_b32 v9, 0
    v_mov_b32 v10, 0
    v_mov_b32 v11, 0
    s_mov_b64 exec, 15
    buffer_store_dword v8, v6, s[12:15], 0 offen sc1
    s_mov_b64 exec, -1
    """)
    if not side:
        lab = A.uid("L_nz")
        A(f"""
        s_mul_i32 s33, {s(S_P)}, 5
        s_add_u32 s33, s33, {s(S_DUTY)}
        s_mul_i32 s34, {s(S_CIDX)}, 10
        s_add_u32 s33, s33, s34
        s_lshl_b32 s33, s33, 2
        s_lshr_b32 s34, {s(S_W)}, 1
        s_add_u32 s33, s33, s34
        s_lshl_b32 s33, s33, 9
        s_add_u32 {s(S_CSO)}, s33, {CSP}
        s_cmp_gt_u32 {s(S_DUTY)}, 4
        s_cbranch_scc1 {lab}
        v_lshlrev_b32 v7, 4, {v(L)}
        s_mov_b64 exec, 0xffffffff
        buffer_store_dwordx4 v[8:11], v7, s[12:15], {s(S_CSO)} offen sc1
        s_mov_b64 exec, -1
        {lab}:
        """)
    A(f"""
    v_lshlrev_b32 v6, 4, {v(L)}
    v_lshlrev_b32 v7, 2, {v(L)}
    buffer_load_dwordx4 {v(V_ROW, 4)}, v6, s[8:11], s70 offen
    buffer_load_dword {v(V_ROW + 4)}, v7, s[8:11], s70 offen offset:1024
    """)

def count_in(A):
    lab = A.uid("L_cnt")
    A(f"""
    s_cmp_lg_u32 {s(S_W)}, 0
    s_cbranch_scc1 {lab}
    v_mov_b32 v6, 0
    v_mov_b32 v7, 1
    s_mov_b64 exec, 1
    buffer_atomic_add v7, v6, s[16:19], 0 offen sc1
    s_mov_b64 exec, -1
    {lab}:
    """)

def row_stats(A):
    A("v_mov_b32 v8, 0\nv_mov_b32 v9, 0")
    for i in range(5):
        A(f"v_dot2c_f32_bf16 v8, {s(S_ONES)}, {v(V_ROW + i)}")
        A(f"v_dot2c_f32_bf16 v9, {v(V_ROW + i)}, {v(V_ROW + i)}")
    A("s_nop 2")
    for sh in (8, 4, 2, 1):
        A(f"v_add_f32_dpp v8, v8, v8 row_ror:{sh} row_mask:0xf bank_mask:0xf")
        A(f"v_add_f32_dpp v9, v9, v9 row_ror:{sh} row_mask:0xf bank_mask:0xf")
        A("s_nop 0")
    for op in ("v_permlane16_swap_b32", "v_permlane32_swap_b32"):
        A(f"""
        v_mov_b32 v10, v8
        v_mov_b32 v11, v9
        s_nop 1
        {op} v8, v10
        {op} v9, v11
        s_nop 1
        v_add_f32 v8, v8, v10
        v_add_f32 v9, v9, v11
        """)
    A(f"""
    s_mov_b32 s34, 0x3acccccd
    s_mov_b32 s35, 0x3727c5ac
    v_mul_f32 v8, s34, v8
    v_mul_f32 v9, s34, v9
    v_fma_f32 v9, -v8, v8, v9
    v_max_f32 v9, 0, v9
    v_cvt_pk_bf16_f32 v10, v8, v9
    v_lshlrev_b32 v8, 16, v10
    v_and_b32 v9, 0xffff0000, v10
    v_add_f32 v9, s35, v9
    v_cvt_pk_bf16_f32 v10, v9, v9
    v_lshlrev_b32 v10, 16, v10
    v_sqrt_f32 v10, v10
    s_nop 0
    v_cvt_pk_bf16_f32 v10, v10, v10
    v_lshlrev_b32 v10, 16, v10
    v_rcp_f32 v9, v10
    s_lshl_b32 s32, s2, 3
    s_add_u32 s32, s32, {s(S_W)}
    s_lshl_b32 s32, s32, 3
    s_add_u32 s32, s32, {STAT}
    v_mov_b32 v6, 0
    ;[
    s_mov_b64 exec, 1
    buffer_store_dwordx2 v[8:9], v6, s[12:15], s32 offen sc1
    s_mov_b64 exec, -1
    ;]
    """)

FW_ALL = (1 << 54) - 1

def fw_issue(A, reg):
    A(f"v_lshlrev_b32 v6, 7, {v(V_L)}\nv_add_u32 v6, {FW}, v6\nbuffer_load_dword {v(reg)}, v6, s[12:15], 0 offen sc1")
def fw_cond(A, reg, mask):
    A(f"""
    v_cmp_ne_u32 s[68:69], 0, {v(reg)}
    s_mov_b32 s34, {hex(mask & 0xffffffff)}
    s_mov_b32 s35, {hex(mask >> 32)}
    s_and_b64 s[68:69], s[68:69], s[34:35]
    s_cmp_eq_u64 s[68:69], s[34:35]
    """)
def cnt_issue(A, reg):
    A(f"v_mov_b32 v6, 0\nbuffer_load_dword {v(reg)}, v6, s[16:19], 0 offen sc1")
def cnt_cond(A, reg):
    A(f"v_readfirstlane_b32 s34, {v(reg)}\ns_nop 1\ns_cmp_ge_u32 s34, 256")

def check(slow, name, cond, issue):
    def inline(B):
        cond(B); B(f"s_cbranch_scc0 {name}_slow"); B.label(name + "_ok")
    def outl(B):
        B.label(name + "_slow")
        B("s_mov_b32 s71, 0"); B.label(name + "_spin")
        issue(B); B("s_waitcnt vmcnt(0)")
        cond(B)
        B(f"s_cbranch_scc1 {name}_ok\ns_add_u32 s71, s71, 1\ns_cmp_lt_u32 s71, 0x100000\ns_cbranch_scc1 {name}_spin\ns_branch {name}_ok")
    slow.append(outl)
    return inline

def wdf_base(A, dst, wsreg):
    A(f"""
    s_mul_i32 s34, {wsreg}, 14
    s_cmp_eq_u32 {wsreg}, 3
    s_cselect_b32 s35, 1, 0
    s_sub_u32 s34, s34, s35
    s_mul_i32 s35, {s(S_N)}, 54
    s_add_u32 s34, s34, s35
    s_mul_i32 {dst}, s34, 5120
    s_add_u32 {dst}, {dst}, {WDF}
    """)

def epi_loads(A):
    L = V_L
    A(f"""
    v_and_b32 v6, 31, {v(L)}
    s_lshl_b32 s34, {s(S_RB)}, 7
    s_lshl_b32 s35, {s(S_SH)}, 6
    s_add_u32 s34, s34, s35
    v_add_u32 v7, s34, v6
    v_lshlrev_b32 v7, 3, v7
    v_add_u32 v7, {STAT}, v7
    v_lshlrev_b32 v6, 4, v6
    v_lshrrev_b32 v10, 5, {v(L)}
    v_lshl_add_u32 v6, v10, 11, v6
    s_mul_i32 s34, {s(S_CIDX)}, 40
    s_lshr_b32 s35, {s(S_W)}, 1
    s_add_u32 s34, s34, s35
    s_lshl_b32 s34, s34, 9
    s_add_u32 s34, s34, {CSP}
    buffer_load_dwordx2 v[2:3], v7, s[12:15], 0 offen sc1
    buffer_load_dwordx2 v[4:5], v7, s[12:15], 0 offen offset:256 sc1
    """)
    for i in range(5):
        A(f"buffer_load_dwordx4 {v(V_ROW + 4 * i, 4)}, v6, s[12:15], s34 offen sc1")
        if i < 4: A("s_add_u32 s34, s34, 4096")

def setup_main(A):
    L = V_L
    A(f"""
    s_mov_b32 {s(S_TYPE)}, 0
    s_mov_b32 s33, 0
    s_cmp_ge_u32 {s(S_CIDX)}, 9
    s_cselect_b32 {s(S_TYPE)}, 1, {s(S_TYPE)}
    s_cselect_b32 s33, 9, s33
    s_cmp_ge_u32 {s(S_CIDX)}, 11
    s_cselect_b32 {s(S_TYPE)}, 2, {s(S_TYPE)}
    s_cselect_b32 s33, 11, s33
    s_sub_u32 {s(S_C)}, {s(S_CIDX)}, s33
    s_lshr_b32 s32, {s(S_W)}, 2
    s_and_b32 {s(S_SH)}, {s(S_W)}, 1
    s_mov_b32 s8, s36
    s_mov_b32 s9, s37
    s_mov_b32 s10, {X_BYTES}
    s_mov_b32 s11, 0x20000
    s_mul_i32 s70, {s(S_RB)}, {128 * 1280}
    s_mul_i32 s34, {s(S_P)}, 640
    s_add_u32 s70, s70, s34
    s_lshl_b32 {s(S_XDST)}, {s(S_W)}, 11
    s_add_u32 {s(S_XDST)}, {s(S_XDST)}, {XBASE}
    """)
    A(f"""
    v_lshrrev_b32 v2, 3, {v(L)}
    s_lshl_b32 s34, {s(S_W)}, 4
    v_add_u32 v2, s34, v2
    v_mul_u32_u24 v3, 1280, v2
    v_lshrrev_b32 v4, 4, {v(L)}
    v_xor_b32 v4, v4, {v(L)}
    v_and_b32 v4, 7, v4
    v_lshl_add_u32 {v(V_DX)}, v4, 4, v3
    v_xor_b32 v4, 4, v4
    v_lshl_add_u32 v4, v4, 4, v3
    v_add_u32 {v(V_DX + 1)}, {8 * 1280}, v4
    """)
    def xdma(g, half):
        A(f"s_add_u32 {s(S_T)}, {s(S_XDST)}, {g * XSLOT + half * 1024}\ns_mov_b32 m0, {s(S_T)}\ns_add_u32 {s(S_T)}, s70, {g * 128}")
        A(f"buffer_load_dwordx4 {v(V_DX + half)}, {s(8, 4)}, {s(S_T)} offen lds")
    xdma(0, 0); xdma(0, 1)
    A(f"""
    s_add_u32 {s(S_XD)}, s70, {2 * 128}
    s_cmp_eq_u32 {s(S_TYPE)}, 0
    s_cbranch_scc0 L_setup_qkv
    s_cmp_eq_u32 s32, 0
    s_cselect_b32 s4, s40, s42
    s_cselect_b32 s5, s41, s43
    s_mov_b32 s6, {WG_BYTES}
    s_mov_b32 s33, 3456
    s_mul_i32 {s(S_WSO)}, {s(S_C)}, 384
    s_mov_b32 s68, 24
    s_mov_b32 s69, 3
    s_branch L_setup_done
    L_setup_qkv:
    s_mov_b32 s4, s38
    s_mov_b32 s5, s39
    s_mov_b32 s6, {WQKV_BYTES}
    s_mov_b32 s33, 3840
    s_mov_b32 s68, 20
    s_mov_b32 s69, 2
    s_cmp_eq_u32 {s(S_TYPE)}, 1
    s_cbranch_scc0 L_setup_kv
    s_mul_i32 {s(S_WSO)}, {s(S_C)}, 640
    s_mul_i32 s34, s32, 320
    s_add_u32 {s(S_WSO)}, {s(S_WSO)}, s34
    s_branch L_setup_done
    L_setup_kv:
    s_mul_i32 {s(S_WSO)}, {s(S_C)}, 320
    s_mul_i32 s34, s32, 1280
    s_add_u32 {s(S_WSO)}, {s(S_WSO)}, s34
    s_add_u32 {s(S_WSO)}, {s(S_WSO)}, 1280
    L_setup_done:
    s_mov_b32 s7, 0x20000
    s_lshl_b32 {s(S_WSTEP)}, s33, 5
    s_and_b32 s34, {s(S_W)}, 3
    s_lshl_b32 s35, s34, 3
    s_mul_i32 s35, s35, s33
    s_add_u32 {s(S_WSO)}, {s(S_WSO)}, s35
    s_mul_i32 s35, {s(S_WSTEP)}, 10
    s_mul_i32 s35, s35, {s(S_P)}
    s_add_u32 {s(S_WSO)}, {s(S_WSO)}, s35
    s_mul_i32 {s(S_WDST)}, s32, {SEGB}
    s_mul_i32 s34, s34, 3072
    s_add_u32 {s(S_WDST)}, {s(S_WDST)}, s34
    s_mov_b32 s35, -24
    """)
    for j in range(3):
        A(f"""
        v_add_u32 v2, {64 * j}, {v(L)}
        v_mul_u32_u24 v3, 2731, v2
        v_lshrrev_b32 v3, 16, v3
        v_mad_i32_i24 v4, v3, s35, v2
        v_and_b32 v5, 3, v3
        v_lshlrev_b32 v5, 1, v5
        v_xor_b32 v4, v5, v4
        v_lshlrev_b32 v5, 4, v4
        v_mad_u32_u24 v5, v3, s33, v5
        v_subrev_u32 v5, {1024 * j}, v5
        v_cmp_gt_u32 vcc, s68, v4
        v_mov_b32 v6, 0x40000000
        s_nop 0
        v_cndmask_b32 {v(V_DW + j)}, v6, v5, vcc
        """)
    def wdma(slot):
        A(f"s_add_u32 {s(S_T)}, {s(S_WDST)}, {slot * WSLOT}\ns_mov_b32 m0, {s(S_T)}\ns_nop 0")
        for j in range(3):
            A(f"buffer_load_dwordx4 {v(V_DW + j)}, {s(4, 4)}, {s(S_WSO)} offen offset:{1024 * j} lds")
        A(f"s_add_u32 {s(S_WSO)}, {s(S_WSO)}, {s(S_WSTEP)}")
    wdma(0)
    A(f"""
    s_lshr_b32 s34, {s(S_W)}, 1
    s_and_b32 s34, s34, 1
    s_cmp_eq_u32 s32, 0
    s_cselect_b32 s35, 3, s69
    s_mov_b32 {s(S_B)}, s35
    s_mul_i32 s34, s34, s35
    s_cselect_b32 s35, 0, 6
    s_add_u32 {s(S_TB)}, s34, s35
    s_and_b32 {s(S_DUTY)}, {s(S_RB)}, 7
    s_cmp_eq_u32 {s(S_SH)}, s32
    s_cselect_b32 {s(S_DUTY)}, {s(S_DUTY)}, 30
    s_cmp_gt_u32 {s(S_DUTY)}, 4
    s_cselect_b32 {s(S_DUTY)}, 30, {s(S_DUTY)}
    s_mov_b32 {s(S_ONES)}, 0x3f803f80
    """)
    A(f"s_mov_b32 s71, s70")
    A(f"v_lshlrev_b32 v6, 2, {v(L)}\nv_add_u32 v6, {LFL}, v6\nv_mov_b32 v7, 0\nds_write_b32 v6, v7")
    zero_and_row(A, False)
    A(f"s_mov_b32 s70, s71")
    wdma(1); xdma(1, 0); xdma(1, 1); wdma(2); wdma(3); xdma(2, 0)
    Prof.stamp(A, 11)
    A(f"""
    v_lshrrev_b32 v2, 4, {v(L)}
    v_and_b32 v3, 1, v2
    v_lshrrev_b32 v2, 1, v2
    v_bfe_u32 v4, {v(L)}, 2, 2
    v_lshl_add_u32 v5, v2, 3, v4
    v_mul_u32_u24 v5, 384, v5
    v_mul_u32_u24 v3, {SEGB}, v3
    v_add_u32 v5, v5, v3
    v_and_b32 v6, 1, {v(L)}
    v_bfe_u32 v7, {v(L)}, 1, 1
    v_lshl_add_u32 v5, v7, 3, v5
    v_lshlrev_b32 v4, 1, v4
    """)
    for t in range(3):
        A(f"""
        s_add_u32 s34, {s(S_TB)}, {t}
        s_lshl_b32 s34, s34, 1
        v_add_u32 v8, s34, v6
        v_xor_b32 v8, v8, v4
        v_lshl_add_u32 {v(V_WR + t)}, v8, 4, v5
        """)
    A(f"""
    v_and_b32 v2, 31, {v(L)}
    s_lshl_b32 s34, {s(S_SH)}, 6
    v_add_u32 v3, s34, v2
    v_lshlrev_b32 v3, 7, v3
    v_add_u32 v3, {XBASE}, v3
    v_bfe_u32 v4, {v(L)}, 1, 3
    v_lshrrev_b32 v5, 5, {v(L)}
    """)
    for k in range(4):
        A(f"""
        v_add_u32 v6, {2 * k}, v5
        v_xor_b32 v6, v6, v4
        v_lshl_add_u32 {v(V_XR + k)}, v6, 4, v3
        """)
    for r in range(V_ACC, V_ACC + 96):
        A(f"v_mov_b32 {v(r)}, 0")
    for t in range(3):
        A(f"v_mov_b32 {v(V_CS + t)}, 0")
    for t in range(3):
        A(f"v_add_u32 {v(V_WR2 + t)}, {2 * WSLOT}, {v(V_WR + t)}")
    A(f"""
    v_lshlrev_b32 {v(V_L16)}, 4, {v(L)}
    s_mov_b32 {s(S_XSTEP)}, 128
    s_mul_i32 {s(S_XWRAP)}, {s(S_P)}, 1280
    s_mul_i32 {s(S_WWRAP)}, {s(S_WSTEP)}, 20
    s_mul_i32 {s(S_WWRAP)}, {s(S_WWRAP)}, {s(S_P)}
    s_and_b32 s33, {s(S_W)}, 3
    """)
    wdf_base(A, s(S_WSO2), "s33")
    A(f"""
    s_lshr_b32 s34, {s(S_W)}, 2
    s_mul_i32 s34, s34, 3072
    s_add_u32 {s(S_WSO2)}, {s(S_WSO2)}, s34
    s_lshr_b32 s33, {s(S_W)}, 1
    """)
    wdf_base(A, s(S_XD2), "s33")
    A(f"""
    s_and_b32 s34, {s(S_W)}, 1
    s_lshl_b32 s34, s34, 11
    s_add_u32 {s(S_XD2)}, {s(S_XD2)}, s34
    s_add_u32 {s(S_XD2)}, {s(S_XD2)}, {24 * 1024}
    s_cmp_eq_u32 {s(S_TYPE)}, 2
    s_cselect_b32 {s(S_WSO2)}, 0x7f000000, {s(S_WSO2)}
    s_cselect_b32 {s(S_XD2)}, 0x7f000000, {s(S_XD2)}
    s_waitcnt vmcnt(12) lgkmcnt(0)
    s_barrier
    """)
    count_in(A)
    Prof.stamp(A, 2); Prof.stamp(A, 8, real=True)

def first_reads(A, b):
    for txt, regs in reads_for(b, 0, 0, 0):
        A(txt)

V_CSV = 16
V_TMP = 48
LOG2E = 0x3fb8aa3b
EPS6 = 0x358637bd

def epi_common(A, b, slow):
    L = V_L
    Prof.stamp(A, 3); Prof.stamp(A, 9, real=True)
    A(f"s_waitcnt vmcnt({5 if PRELOAD else 4}) lgkmcnt(0)")
    def cond(B):
        regs = [V_ROW + 4 * i + t for i in range(5) for t in range(b)] + [3, 5]
        B(f"v_min3_u32 v6, {v(regs[0])}, {v(regs[1])}, {v(regs[2])}")
        rest = regs[3:]
        while rest:
            if len(rest) >= 2:
                B(f"v_min3_u32 v6, v6, {v(rest[0])}, {v(rest[1])}"); rest = rest[2:]
            else:
                B(f"v_min_u32 v6, v6, {v(rest[0])}"); rest = rest[1:]
        B("v_cmp_eq_u32 vcc, 0, v6\ns_nop 4\ns_cmp_eq_u64 vcc, 0")
    check(slow, f"L_ev{b}", cond, epi_loads)(A)
    for i in range(1, 5):
        for t in range(b):
            A(f"v_add_f32 {v(V_ROW + t)}, {v(V_ROW + t)}, {v(V_ROW + 4 * i + t)}")
    for t in range(b):
        A(f"v_mov_b32 {v(V_ROW + 4 + t)}, {v(V_ROW + t)}")
    A(f"""
    v_and_b32 v8, 31, {v(L)}
    v_lshlrev_b32 v8, 2, v8
    s_mul_i32 s34, {s(S_W)}, 384
    s_add_u32 s34, s34, {CSB}
    v_add_u32 v8, s34, v8
    """)
    for t in range(b):
        A(f"v_permlane32_swap_b32 {v(V_ROW + t)}, {v(V_ROW + 4 + t)}")
    A("s_nop 0")
    for t in range(b):
        A(f"v_add_f32 {v(V_ROW + t)}, {v(V_ROW + t)}, {v(V_ROW + 4 + t)}")
    for t in range(b):
        A(f"ds_write_b32 v8, {v(V_ROW + t)} offset:{128 * t}")
    A(f"""
    v_lshrrev_b32 v10, 5, {v(L)}
    v_lshl_add_u32 v10, v10, 4, s34
    v_sub_f32 v2, 0, v2
    v_sub_f32 v4, 0, v4
    s_waitcnt lgkmcnt(0)
    """)
    Prof.stamp(A, 4)

def load_cs(A, t):
    for j in range(4):
        A(f"ds_read_b128 {v(V_CSV + 4 * j, 4)}, v10 offset:{128 * t + 32 * j}")
    A("s_waitcnt lgkmcnt(0)")

def center(A, T, t):
    m = 2 + 2 * T
    for q in range(8):
        r = acc(T, t) + 2 * q
        A(f"v_pk_fma_f32 {v(r, 2)}, {v(V_CSV + 2 * q, 2)}, {v(m, 2)}, {v(r, 2)} op_sel_hi:[1,0,1]")

def epi_gu(A):
    L = V_L
    A("v_mul_f32 v6, v3, v3\nv_mul_f32 v8, v5, v5")
    A(f"""
    v_bfe_u32 v12, {v(L)}, 4, 1
    v_lshlrev_b32 v12, 10, v12
    v_lshrrev_b32 v13, 5, {v(L)}
    v_lshl_add_u32 v12, v13, 8, v12
    v_and_b32 v13, 15, {v(L)}
    v_lshl_add_u32 v12, v13, 4, v12
    s_lshl_b32 s55, {s(S_RB)}, 1
    s_add_u32 s55, s55, {s(S_SH)}
    s_mul_i32 s55, s55, 54
    s_mul_i32 s56, {s(S_C)}, 12
    s_add_u32 s56, s56, {s(S_TB)}
    """)
    for t in range(3):
        load_cs(A, t)
        A(f"""
        s_add_u32 s57, s56, {t}
        s_lshr_b32 s33, s57, 1
        s_add_u32 s33, s33, s55
        s_lshl_b32 s33, s33, 12
        s_and_b32 s57, s57, 1
        s_lshl_b32 s57, s57, 9
        s_add_u32 s33, s33, s57
        """)
        for T in range(2):
            center(A, T, t)
            r = acc(T, t)
            rs = 6 + 2 * T
            for q in range(4):
                A(f"v_pk_mul_f32 {v(r + 2 * q, 2)}, {v(r + 2 * q, 2)}, {v(r + 8 + 2 * q, 2)}")
            for q in range(4):
                A(f"v_pk_mul_f32 {v(r + 2 * q, 2)}, {v(r + 2 * q, 2)}, {v(rs, 2)} op_sel_hi:[1,0]")
            for q in range(4):
                A(f"v_cvt_pk_bf16_f32 {v(r + 8 + q)}, {v(r + 2 * q)}, {v(r + 2 * q + 1)}")
            A(f"buffer_store_dwordx4 {v(r + 8, 4)}, v12, s[12:15], s33 offen offset:{2048 * T}{ST}")

def phi8(A, r, T, n, tmp):
    rs = 3 + 2 * T
    rl = 6 + 2 * T
    for q in range(n // 2):
        A(f"v_pk_mul_f32 {v(tmp + 2 * q, 2)}, {v(r + 2 * q, 2)}, {v(rl, 2)} op_sel_hi:[1,0]")
    for q in range(n):
        A(f"v_max_f32 {v(r + q)}, 0, {v(r + q)}")
    for q in range(n):
        A(f"v_exp_f32 {v(tmp + q)}, {v(tmp + q)} clamp")
    for q in range(n):
        A(f"v_fma_f32 {v(r + q)}, {v(r + q)}, {v(rs)}, v14")
    for q in range(n // 2):
        A(f"v_pk_add_f32 {v(r + 2 * q, 2)}, {v(r + 2 * q, 2)}, {v(tmp + 2 * q, 2)}")

def epi_q(A, b):
    L = V_L
    A(f"v_mul_f32 v6, {hex(LOG2E)}, v3\nv_mul_f32 v8, {hex(LOG2E)}, v5\nv_mov_b32 v14, {hex(EPS6)}")
    A(f"""
    v_bfe_u32 v12, {v(L)}, 4, 1
    v_lshlrev_b32 v12, 10, v12
    v_and_b32 v13, 15, {v(L)}
    v_lshl_add_u32 v12, v13, 4, v12
    v_lshrrev_b32 v13, 5, {v(L)}
    s_lshl_b32 s55, {s(S_RB)}, 1
    s_add_u32 s55, s55, {s(S_SH)}
    s_mul_i32 s55, s55, 20
    s_mul_i32 s56, {s(S_C)}, 10
    s_add_u32 s55, s55, s56
    s_lshl_b32 s55, s55, 12
    s_add_u32 s55, s55, {PQF}
    s_add_u32 s56, s55, {5 * 4096}
    """)
    for t in range(b):
        load_cs(A, t)
        A(f"""
        s_add_u32 s57, {s(S_TB)}, {t}
        s_lshl_b32 s57, s57, 1
        v_add_u32 v15, s57, v13
        v_mul_u32_u24 v64, 52, v15
        v_lshrrev_b32 v64, 8, v64
        v_mul_u32_u24 v65, 5, v64
        v_sub_u32 v15, v15, v65
        v_lshlrev_b32 v15, 12, v15
        v_lshl_add_u32 v15, v64, 8, v15
        v_add_u32 v15, v15, v12
        """)
        for T in range(2):
            center(A, T, t)
            r = acc(T, t)
            phi8(A, r, T, 16, V_TMP)
            for q in range(8):
                A(f"v_cvt_pk_bf16_f32 {v(V_TMP + q)}, {v(r + 2 * q)}, {v(r + 2 * q + 1)}")
            A(f"buffer_store_dwordx4 {v(V_TMP, 4)}, v15, s[12:15], s55 offen offset:{2048 * T}{ST}")
            A(f"buffer_store_dwordx4 {v(V_TMP + 4, 4)}, v15, s[12:15], s56 offen offset:{2048 * T}{ST}")
            A("s_nop 1")

def epi_kv(A, b):
    L = V_L
    A(f"v_mul_f32 v6, {hex(LOG2E)}, v3\nv_mul_f32 v8, {hex(LOG2E)}, v5\nv_mov_b32 v14, {hex(EPS6)}")
    A(f"""
    v_and_b32 v12, 31, {v(L)}
    s_lshl_b32 s55, {s(S_SH)}, 6
    v_add_u32 v12, s55, v12
    v_mul_u32_u24 v12, 320, v12
    v_lshrrev_b32 v13, 5, {v(L)}
    v_lshl_add_u32 v12, v13, 4, v12
    s_lshl_b32 s55, {s(S_TB)}, 5
    v_add_u32 v12, s55, v12
    """)
    for t in range(b):
        load_cs(A, t)
        for T in range(2):
            center(A, T, t)
            r = acc(T, t)
            phi8(A, r, T, 8, V_TMP)
            rsp = 2 + 2 * T
            for q in range(4):
                A(f"v_pk_mul_f32 {v(r + 8 + 2 * q, 2)}, {v(r + 8 + 2 * q, 2)}, {v(rsp, 2)} op_sel:[0,1] op_sel_hi:[1,1]")
            for q in range(8):
                A(f"v_cvt_pk_bf16_f32 {v(V_TMP + q)}, {v(r + 2 * q)}, {v(r + 2 * q + 1)}")
            A(f"ds_write_b128 v12, {v(V_TMP, 4)} offset:{T * 32 * 320 + 32 * t}")
            A(f"ds_write_b128 v12, {v(V_TMP + 4, 4)} offset:{40960 + T * 32 * 320 + 32 * t}")

def epi_kv_tail(A):
    L = V_L
    A("s_waitcnt lgkmcnt(0)\ns_barrier")
    A(f"""
    v_lshrrev_b32 v2, 5, {v(L)}
    v_bfe_u32 v3, {v(L)}, 2, 2
    v_lshl_add_u32 v2, v2, 3, v3
    v_mul_u32_u24 v2, 320, v2
    v_bfe_u32 v3, {v(L)}, 4, 1
    v_lshl_add_u32 v2, v3, 5, v2
    v_and_b32 v3, 3, {v(L)}
    v_lshl_add_u32 v2, v3, 3, v2
    s_mul_i32 s55, {s(S_W)}, 40
    v_add_u32 v2, s55, v2
    v_mov_b32 v4, {s(S_ONES)}
    v_mov_b32 v5, {s(S_ONES)}
    v_mov_b32 v6, {s(S_ONES)}
    v_mov_b32 v7, {s(S_ONES)}
    v_add_u32 v8, 40960, v2
    """)
    D1, D2 = 160, 176
    for r in range(32):
        A(f"v_mov_b32 {v(D1 + r)}, 0")
    for st in range(8):
        base = 32 + 8 * st
        for p in range(2):
            A(f"ds_read_b64_tr_b16 {v(base + 2 * p, 2)}, v2 offset:{(16 * st + 4 * p) * 320}")
        for p in range(2):
            A(f"ds_read_b64_tr_b16 {v(base + 4 + 2 * p, 2)}, v8 offset:{(16 * st + 4 * p) * 320}")
    for st in range(8):
        base = 32 + 8 * st
        A(f"s_waitcnt lgkmcnt({min(15, 4 * (7 - st))})")
        A(f"v_mfma_f32_32x32x16_bf16 {v(D1, 16)}, {v(base, 4)}, {v(base + 4, 4)}, {v(D1, 16)}")
        A(f"v_mfma_f32_32x32x16_bf16 {v(D2, 16)}, {v(base, 4)}, {v(4, 4)}, {v(D2, 16)}")
    A(f"""
    v_and_b32 v8, 31, {v(L)}
    v_lshrrev_b32 v9, 5, {v(L)}
    v_mul_u32_u24 v10, 80, v8
    s_lshl_b32 s55, {s(S_C)}, 3
    s_add_u32 s55, s55, {s(S_W)}
    s_lshl_b32 s55, s55, 4
    s_add_u32 s55, s55, {s(S_RB)}
    s_mul_i32 s55, s55, {KVP_BLK}
    s_add_u32 s55, s55, {KVP}
    v_cmp_eq_u32 vcc, 20, v8
    v_lshl_add_u32 v10, v9, 4, v10
    s_nop 7
    """)
    for r in range(12):
        A(f"v_cndmask_b32 {v(D1 + r)}, {v(D1 + r)}, {v(D2 + r)}, vcc")
    A(f"""
    v_cmp_ge_u32 vcc, 20, v8
    s_and_saveexec_b64 s[56:57], vcc
    buffer_store_dwordx4 {v(D1, 4)}, v10, s[12:15], s55 offen{ST}
    buffer_store_dwordx4 {v(D1 + 4, 4)}, v10, s[12:15], s55 offen offset:32{ST}
    v_cmp_eq_u32 vcc, 0, v9
    s_and_b64 exec, exec, vcc
    buffer_store_dwordx4 {v(D1 + 8, 4)}, v10, s[12:15], s55 offen offset:64{ST}
    s_mov_b64 exec, s[56:57]
    """)

def post_f1(A):
    lab = A.uid("L_f1")
    A(f"""
    s_waitcnt vmcnt(0) lgkmcnt(0)
    s_barrier
    s_cmp_lg_u32 {s(S_W)}, 0
    s_cbranch_scc1 {lab}
    s_lshl_b32 s34, {s(S_RB)}, 4
    s_add_u32 s34, s34, {s(S_CIDX)}
    s_lshl_b32 s34, s34, 7
    s_add_u32 s34, s34, {F1}
    v_mov_b32 v6, 0
    v_mov_b32 v7, 1
    s_mov_b64 exec, 1
    buffer_store_dword v7, v6, s[12:15], s34 offen sc1
    s_mov_b64 exec, -1
    {lab}:
    """)

def kappa_of(A, dst, n):
    A(f"""
    s_mov_b32 {dst}, {n}
    s_cmp_ge_u32 {n}, 7
    s_cselect_b32 s35, 7, 0
    s_add_u32 {dst}, {dst}, s35
    s_cmp_ge_u32 {n}, 14
    s_cselect_b32 s35, 7, 0
    s_add_u32 {dst}, {dst}, s35
    s_cmp_ge_u32 {n}, 21
    s_cselect_b32 s35, 6, 0
    s_add_u32 {dst}, {dst}, s35
    s_sub_u32 s35, {n}, 21
    s_cmp_ge_u32 {n}, 28
    s_cselect_b32 {dst}, s35, {dst}
    s_cmp_ge_u32 {n}, 35
    s_cselect_b32 s35, 7, 0
    s_add_u32 {dst}, {dst}, s35
    s_cmp_ge_u32 {n}, 42
    s_cselect_b32 s35, 7, 0
    s_add_u32 {dst}, {dst}, s35
    s_cmp_ge_u32 {n}, 48
    s_cselect_b32 s35, 7, 0
    s_add_u32 {dst}, {dst}, s35
    """)

def side(A):
    L = V_L
    K = [24, 25, 26, 27]
    A(f"""
    s_mov_b32 s8, s36
    s_mov_b32 s9, s37
    s_mov_b32 s10, {X_BYTES}
    s_mov_b32 s11, 0x20000
    s_mov_b32 s4, s62
    s_mov_b32 s5, s63
    s_mov_b32 s6, {WD_BYTES}
    s_mov_b32 s7, 0x20000
    s_mov_b32 {s(S_ONES)}, 0x3f803f80
    s_mov_b32 {s(S_TYPE)}, 3
    """)
    for i in range(4):
        A(f"s_add_u32 s33, {s(S_RB)}, {16 * i}")
        kappa_of(A, s(K[i]), "s33")
        if i == 3: A(f"s_cmp_ge_u32 s33, 54\ns_cselect_b32 {s(K[i])}, 63, {s(K[i])}")
    zero_and_row(A, True)
    A(f"v_mov_b32 v6, {s(K[0])}")
    for i in range(1, 4): A(f"v_writelane_b32 v6, {s(K[i])}, {i}")
    A(f"""
    v_lshlrev_b32 v6, 7, v6
    v_add_u32 v30, {FW}, v6
    v_mov_b32 v8, 0
    s_cmp_lg_u32 {s(S_W)}, 0
    s_cbranch_scc1 L_side_nz
    s_mov_b64 exec, 15
    buffer_store_dword v8, v30, s[12:15], 0 offen sc1
    s_mov_b64 exec, -1
    L_side_nz:
    """)
    for i in range(5):
        A(f"""
        s_mul_i32 s32, {s(S_W)}, 320
        s_add_u32 s32, s32, {64 * i}
        v_add_u32 v2, s32, {v(L)}
        v_mul_u32_u24 v3, 3277, v2
        v_lshrrev_b32 v3, 18, v3
        v_mul_u32_u24 v4, 80, v3
        v_sub_u32 v4, v2, v4
        v_and_b32 v5, 3, v3
        v_lshlrev_b32 v5, 1, v5
        v_xor_b32 v4, v5, v4
        v_mul_u32_u24 v3, 1280, v3
        v_lshl_add_u32 {v(20 + i)}, v4, 4, v3
        """)
    def dma(i):
        A(f"""
        s_mul_i32 s35, {s(K[i])}, {32 * 1280}
        s_cmp_ge_u32 {s(K[i])}, 54
        s_cselect_b32 s35, 0x7f000000, s35
        s_mul_i32 s33, {s(S_W)}, 5120
        s_add_u32 s33, s33, {40960 * i}
        """)
        for q in range(5):
            A(f"s_mov_b32 m0, s33\ns_add_u32 s33, s33, 1024\nbuffer_load_dwordx4 {v(20 + q)}, s[4:7], s35 offen lds")
    dma(0); dma(1)
    A(f"""
    v_lshrrev_b32 v2, 4, {v(L)}
    v_bfe_u32 v3, {v(L)}, 2, 2
    v_lshl_add_u32 v4, v2, 3, v3
    v_mul_u32_u24 v4, 1280, v4
    v_and_b32 v5, 1, {v(L)}
    v_lshl_add_u32 v4, v5, 3, v4
    v_bfe_u32 v5, {v(L)}, 1, 1
    v_lshlrev_b32 v3, 1, v3
    """)
    for n in range(5):
        A(f"""
        s_mul_i32 s32, {s(S_W)}, 10
        s_add_u32 s32, s32, {2 * n}
        v_add_u32 v6, s32, v5
        v_xor_b32 v6, v6, v3
        v_lshl_add_u32 {v(12 + n)}, v6, 4, v4
        """)
    A(f"v_lshlrev_b32 v31, 4, {v(L)}")
    A("s_waitcnt vmcnt(10)\ns_barrier")
    count_in(A)
    row_stats(A)
    def job(i):
        for n in range(5):
            for p in range(2):
                off = 40960 * i + 4 * p * 1280
                if off > 65535 - 0:
                    A(f"ds_read_b64_tr_b16 {v(48 + 4 * n + 2 * p, 2)}, {v(92 + n)} offset:{off - 81920}")
                else:
                    A(f"ds_read_b64_tr_b16 {v(48 + 4 * n + 2 * p, 2)}, {v(12 + n)} offset:{off}")
        A(f"""
        s_mul_i32 s34, {s(S_W)}, 54
        s_add_u32 s34, s34, {s(K[i])}
        s_mul_i32 s34, s34, 5120
        s_add_u32 s34, s34, {WDF}
        s_cmp_ge_u32 {s(K[i])}, 54
        s_cselect_b32 s34, 0x7f000000, s34
        s_waitcnt lgkmcnt(0)
        """)
        for n in range(5):
            A(f"buffer_store_dwordx4 {v(48 + 4 * n, 4)}, v31, s[12:15], s34 offen{ST}")
            if n < 4: A("s_add_u32 s34, s34, 1024")
        A("s_nop 1")
    for n in range(5): A(f"v_add_u32 {v(92 + n)}, 81920, {v(12 + n)}")
    def flags(lo):
        lab = A.uid("L_sf")
        A(f"""
        s_cmp_lg_u32 {s(S_W)}, 0
        s_cbranch_scc1 {lab}
        v_mov_b32 v7, 1
        s_mov_b64 exec, {3 << lo}
        buffer_store_dword v7, v30, s[12:15], 0 offen sc1
        s_mov_b64 exec, -1
        {lab}:
        """)
    A("s_waitcnt vmcnt(6)\ns_barrier")
    job(0)
    A("s_waitcnt vmcnt(5)\ns_barrier")
    job(1)
    dma(2); dma(3)
    A("s_waitcnt vmcnt(10)\ns_barrier")
    flags(0)
    A("s_waitcnt vmcnt(5)\ns_barrier")
    job(2)
    A("s_waitcnt vmcnt(5)\ns_barrier")
    job(3)
    A("s_waitcnt vmcnt(0)\ns_barrier")
    flags(2)

def gen_p1(A, KN, tail):
    A(f".globl {KN}\n.p2align 8\n.type {KN},@function\n{KN}:")
    A(f"s_cmp_ge_u32 s2, 256\ns_cbranch_scc1 L_end_{KN}")
    Prof.stamp(A, 0, real=True); Prof.stamp(A, 1)
    A(f"""
    s_load_dwordx4 s[36:39], s[0:1], 0
    s_load_dwordx4 s[40:43], s[0:1], 32
    s_load_dwordx4 s[44:47], s[0:1], 64
    s_load_dwordx2 s[60:61], s[0:1], 16
    s_load_dwordx2 s[62:63], s[0:1], 48
    s_load_dwordx2 s[64:65], s[0:1], 56
    v_and_b32 {v(V_L)}, 63, v0
    v_lshrrev_b32 v2, 6, v0
    s_nop 0
    v_readfirstlane_b32 {s(S_W)}, v2
    """)
    decode(A)
    A(f"""
    s_waitcnt lgkmcnt(0)
    s_mov_b32 s12, s46
    s_mov_b32 s13, s47
    s_mov_b32 s14, {WS_USED}
    s_mov_b32 s15, 0x20000
    s_mov_b32 s16, s44
    s_mov_b32 s17, s45
    s_mov_b32 s18, 256
    s_mov_b32 s19, 0x20000
    """)
    Prof.stamp(A, 10)
    A(f"""
    s_cmp_eq_u32 {s(S_CIDX)}, 15
    s_cbranch_scc1 L_side
    """)
    setup_main(A)
    A(f"s_cmp_eq_u32 {s(S_B)}, 2\ns_cbranch_scc1 L_b2")
    slow = []
    first_reads(A, 3)
    main_loop(A, 3, slow)
    epi_common(A, 3, slow)
    A(f"s_cmp_eq_u32 {s(S_TYPE)}, 1\ns_cbranch_scc1 L_q3\ns_cmp_eq_u32 {s(S_TYPE)}, 2\ns_cbranch_scc1 L_kv3")
    epi_gu(A)
    A("s_branch L_p1_done")
    A.label("L_q3"); epi_q(A, 3); A("s_branch L_p1_done")
    A.label("L_kv3"); epi_kv(A, 3); A("s_branch L_kvtail")
    A.label("L_b2")
    first_reads(A, 2)
    main_loop(A, 2, slow)
    epi_common(A, 2, slow)
    A(f"s_cmp_eq_u32 {s(S_TYPE)}, 2\ns_cbranch_scc1 L_kv2")
    epi_q(A, 2); A("s_branch L_p1_done")
    A.label("L_kv2"); epi_kv(A, 2)
    A.label("L_kvtail"); Prof.stamp(A, 5); epi_kv_tail(A)
    A.label("L_p1_done")
    post_f1(A)
    tail(A, "main")
    for fn in slow: fn(A)
    A.label("L_side"); side(A)
    tail(A, "side")
    A.label(f"L_end_{KN}")
    A("s_endpgm")
```

```python
from asmlib import Asm, v, a, s, Prof
from common2 import *
import p1
from p1 import S_W, S_RB, S_TYPE, S_R, S_N, V_L, XBASE, XSLOT, WSLOT, SEGB, LFL, FW_ALL

EXA = 148480
IMG = EXA + 4 * 1792
WOSZ = 20 * 640
F_MSEEN = 0; F_FREE = 1; F_READY = 5; F_EX = 9

S_H = 24; S_A = 25; S_A4 = 26; S_BIG = 27; S_U = 28; S_HD = 29; S_A0 = 30; S_H0 = 31
V_A = 2; V_B = 3; V_LB = 7; V_FL = 10; V_T = 11
ACC = 12; WA = 92; HB = 192
def acc(t, nt): return ACC + (t * 5 + nt) * 4
def wa(slot, nt): return WA + slot * 20 + nt * 4
def hb(ring, t): return HB + ring * 16 + t * 4
SLOT = [0, 1, 0, 1, 0, 1, 0, 2, 3, 4, 1, 0, 2, 3, 4, 1, 0, 2, 3]
BOUND = 0x200000

PROF2 = False
def stamp2(A, k):
    if not PROF2: return
    A(f"s_memrealtime s[70:71]\ns_waitcnt lgkmcnt(0)\nv_writelane_b32 v0, s70, {k}")
def flush2(A):
    if not PROF2: return
    A(f"""
    s_lshl_b32 s70, s2, 3
    s_add_u32 s70, s70, {s(S_W)}
    s_lshl_b32 s70, s70, 8
    s_add_u32 s70, s70, 0x1600000
    s_mov_b32 s14, 0x2000000
    v_lshlrev_b32 v11, 2, {v(V_L)}
    buffer_store_dword v0, v11, s[12:15], s70 offen
    """)

def foff(f):
    if f < 18: return 0, (f // 6) * WSLOT + ((f % 6) // 3) * SEGB + (f % 3) * 1024
    if f < 24: return 1, ((f % 6) // 3) * SEGB + (f % 3) * 1024
    g = 10 + (f - 24) // 4
    return 2, (g % 3) * XSLOT + ((f - 24) % 4) * 1024

class Q:
    def __init__(self, A, cnt): self.A = A; self.cnt = cnt; self.q = []
    def issue(self, text, tag):
        self.A(text); self.q.append(tag)
    def need(self, *tags):
        last = -1
        for i, t in enumerate(self.q):
            if t in tags: last = i
        if last >= 0:
            n = len(self.q) - 1 - last
            assert n <= (63 if self.cnt == "vmcnt" else 15), (self.cnt, n)
            self.A(f"s_waitcnt {self.cnt}({n})")
            self.q = self.q[last + 1:]
    def clear(self): self.q = []

def poll(A, name, addr, nlanes, srd="s[12:15]"):
    mask = (1 << nlanes) - 1
    A(f"""
    s_mov_b32 s34, {hex(mask & 0xffffffff)}
    s_mov_b32 s35, {hex(mask >> 32)}
    s_mov_b64 exec, s[34:35]
    s_mov_b32 s71, 0
    {name}_spin:
    buffer_load_dword {v(V_T)}, {addr}, {srd}, 0 offen sc1
    s_waitcnt vmcnt(0)
    v_cmp_ne_u32 vcc, 0, {v(V_T)}
    s_add_u32 s71, s71, 1
    s_nop 3
    s_cmp_eq_u64 vcc, s[34:35]
    s_cbranch_scc1 {name}_ok
    s_cmp_lt_u32 s71, {BOUND}
    s_cbranch_scc1 {name}_spin
    {name}_ok:
    s_mov_b64 exec, -1
    """)

def lds_wait(A, name, addr, word):
    A(f"""
    s_mov_b32 s71, 0
    {name}_spin:
    ds_read_b32 {v(V_T)}, {addr} offset:{4 * word}
    s_add_u32 s71, s71, 1
    s_waitcnt lgkmcnt(0)
    v_readfirstlane_b32 s34, {v(V_T)}
    s_nop 1
    s_cmp_lg_u32 s34, 0
    s_cbranch_scc1 {name}_ok
    s_cmp_lt_u32 s71, {BOUND}
    s_cbranch_scc1 {name}_spin
    {name}_ok:
    """)

def lds_set_text(addr, word):
    return f"v_mov_b32 {v(V_T)}, 1\nds_write_b32 {addr}, {v(V_T)} offset:{4 * word}"

def kstart(A, dst, w):
    A(f"""
    s_mul_i32 {dst}, {w}, 14
    s_cmp_eq_u32 {w}, 3
    s_cselect_b32 s35, 1, 0
    s_sub_u32 {dst}, {dst}, s35
    """)

def common(A):
    L = V_L
    A(f"""
    s_and_b32 {s(S_U)}, {s(S_W)}, 3
    s_mov_b32 {s(S_BIG)}, 0x7f000000
    v_lshlrev_b32 {v(V_A)}, 4, {v(L)}
    s_mul_i32 s34, {s(S_U)}, 3072
    v_add_u32 {v(V_LB)}, s34, {v(V_A)}
    v_add_u32 {v(V_LB + 1)}, {3 * WSLOT}, {v(V_LB)}
    s_lshl_b32 s34, {s(S_U)}, 12
    s_add_u32 s34, s34, {XBASE}
    v_add_u32 {v(V_LB + 2)}, s34, {v(V_A)}
    s_lshl_b32 s34, {s(S_U)}, 2
    s_add_u32 s34, s34, {LFL}
    v_mov_b32 {v(V_FL)}, s34
    """)
    for t in range(4):
        A(f"""
        s_add_u32 s34, {s(S_U)}, {t}
        s_and_b32 s34, s34, 3
        s_lshl_b32 s34, s34, 10
        v_add_u32 {v(V_B + t)}, s34, {v(V_A)}
        """)

def a_loads(slot, base, base4):
    L = []
    for nt in range(5):
        if nt < 4: L.append(f"buffer_load_dwordx4 {v(wa(slot, nt), 4)}, {v(V_A)}, s[12:15], {base} offen offset:{1024 * nt}")
        else: L.append(f"buffer_load_dwordx4 {v(wa(slot, nt), 4)}, {v(V_A)}, s[12:15], {base4} offen")
    return L

def a_next(A):
    A(f"s_add_u32 {s(S_A)}, {s(S_A)}, 5120\ns_add_u32 {s(S_A4)}, {s(S_A4)}, 5120")

def lds_frag(dst, f):
    b, off = foff(f)
    return f"ds_read_b128 {v(dst, 4)}, {v(V_LB + b)} offset:{off}"

def own_preload(A):
    A(f"""
    s_mul_i32 s32, {s(S_U)}, 3072
    s_mov_b32 s33, {s(S_A0)}
    """)
    for g in range(8):
        A(f"s_add_u32 m0, s32, {(g // 2) * WSLOT + (g % 2) * SEGB}\ns_nop 0")
        for q in range(3):
            A(f"buffer_load_dwordx4 {v(V_A)}, s[12:15], s33 offen offset:{1024 * q} lds")
        A("s_add_u32 s33, s33, 3072")
    A(f"s_lshl_b32 s32, {s(S_U)}, 12\ns_add_u32 s32, s32, {XBASE}")
    for g in (10, 11, 12):
        A(f"s_add_u32 m0, s32, {(g % 3) * XSLOT}\ns_nop 0")
        for q in range(4 if g < 12 else 3):
            A(f"buffer_load_dwordx4 {v(V_A)}, s[12:15], s33 offen offset:{1024 * q} lds")
        A("s_add_u32 s33, s33, 4096")

def compute(A):
    L = V_L
    vq = Q(A, "vmcnt"); lq = Q(A, "lgkmcnt")
    kstart(A, "s33", s(S_U))
    A(f"""
    s_mul_i32 s34, {s(S_N)}, 54
    s_add_u32 s34, s34, s33
    s_mul_i32 {s(S_A0)}, s34, 5120
    s_add_u32 {s(S_A0)}, {s(S_A0)}, {WDF}
    s_mul_i32 s34, {s(S_R)}, 54
    s_add_u32 s34, s34, s33
    s_lshl_b32 {s(S_H)}, s34, 12
    s_add_u32 {s(S_H)}, {s(S_H)}, {HF}
    s_cmp_lt_u32 {s(S_TYPE)}, 2
    s_cbranch_scc1 L_p2_loaded
    s_cmp_lg_u32 {s(S_TYPE)}, 3
    s_cbranch_scc1 L_p2_fwok
    v_lshlrev_b32 v11, 7, {v(L)}
    v_add_u32 v255, {FW}, v11
    """)
    poll(A, "L_p2_fw", "v255", 54)
    A.label("L_p2_fwok")
    own_preload(A)
    A.label("L_p2_loaded")
    A(f"""
    s_add_u32 {s(S_A)}, {s(S_A0)}, {7 * 5120}
    s_add_u32 {s(S_A4)}, {s(S_A)}, 4096
    """)
    for st in (7, 8, 9):
        for x in a_loads(SLOT[st], s(S_A), s(S_A4)): A(x)
        a_next(A)
    A(f"""
    s_lshr_b32 s34, {s(S_R)}, 1
    s_lshl_b32 s34, s34, 4
    s_lshl_b32 s35, {s(S_U)}, 1
    s_add_u32 s34, s34, s35
    v_add_u32 {v(255)}, s34, {v(L)}
    v_lshlrev_b32 {v(255)}, 7, {v(255)}
    v_add_u32 {v(255)}, {F1}, {v(255)}
    """)
    stamp2(A, 1)
    poll(A, "L_p2_h", v(255), 3)
    stamp2(A, 2)
    def b_load(st, t):
        return f"buffer_load_dwordx4 {v(hb(st % 4, t), 4)}, {v(V_B + t)}, s[12:15], {s(S_H)} offen"
    def h_next(st):
        if st == 12:
            A(f"s_add_u32 {s(S_H)}, {s(S_H)}, 4096\ns_cmp_ge_u32 {s(S_U)}, 2\ns_cselect_b32 {s(S_H)}, {s(S_BIG)}, {s(S_H)}")
        else:
            A(f"s_add_u32 {s(S_H)}, {s(S_H)}, 4096")
    for st in range(4):
        for t in range(4): vq.issue(b_load(st, t), ("B", st, t))
        h_next(st)
    for st in range(2):
        for nt in range(5): lq.issue(lds_frag(wa(SLOT[st], nt), 5 * st + nt), ("A", st))
    for st in range(14):
        sl = SLOT[st]
        if st == 13:
            A(f"s_cmp_ge_u32 {s(S_U)}, 2\ns_cbranch_scc1 L_p2_skip13")
        if st < 7: lq.need(("A", st))
        elif st >= 10: vq.need(("A", st))
        if st == 3:
            lq.issue(lds_set_text(v(V_FL), F_FREE), "flag")
        for t in range(4):
            vq.need(("B", st, t))
            for nt in range(5):
                c = "0" if st == 0 else v(acc(t, nt), 4)
                A(f"v_mfma_f32_16x16x32_bf16 {v(acc(t, nt), 4)}, {v(wa(sl, nt), 4)}, {v(hb(st % 4, t), 4)}, {c}")
                if t == 3:
                    if st + 2 < 7:
                        lq.issue(lds_frag(wa(sl, nt), 5 * (st + 2) + nt), ("A", st + 2))
                    elif 5 <= st <= 8:
                        if st == 8 and nt == 0:
                            A(f"s_cmp_ge_u32 {s(S_U)}, 2\ns_cselect_b32 {s(S_A)}, {s(S_BIG)}, {s(S_A)}\ns_cselect_b32 {s(S_A4)}, {s(S_BIG)}, {s(S_A4)}")
                        vq.issue(a_loads(sl, s(S_A), s(S_A4))[nt], ("A", st + 5))
            if st + 4 < 14:
                vq.issue(b_load(st + 4, t), ("B", st + 4, t))
        if st + 4 < 14: h_next(st + 4)
        if 5 <= st <= 8: a_next(A)
        if st in (0, 6, 9): stamp2(A, {0: 3, 6: 4, 9: 5}[st])
    A.label("L_p2_skip13")
    stamp2(A, 6)
    A(f"""
    s_mul_i32 s34, {s(S_N)}, 20
    s_mul_i32 s35, {s(S_U)}, 5
    s_add_u32 s34, s34, s35
    s_mul_i32 {s(S_A)}, s34, 5120
    s_add_u32 {s(S_A)}, {s(S_A)}, {MF}
    s_add_u32 {s(S_A4)}, {s(S_A)}, 4096
    v_mov_b32 v4, {LFL}
    """)
    vq.clear(); lq.clear()
    A("s_waitcnt vmcnt(0)")
    lds_wait(A, "L_p2_ms", "v4", F_MSEEN)
    stamp2(A, 7)
    for st in range(14, 19):
        for x in a_loads(SLOT[st], s(S_A), s(S_A4)): vq.issue(x, ("A", st))
        a_next(A)
    lds_wait(A, "L_p2_rd", v(V_FL), F_READY)
    stamp2(A, 8)
    for k in range(4):
        for t in range(4): lq.issue(lds_frag(hb(k, t), 4 * k + t), ("B", 14 + k, t))
    A(f"""
    v_and_b32 v4, 15, {v(L)}
    s_lshl_b32 s34, {s(S_R)}, 6
    s_lshl_b32 s35, {s(S_U)}, 4
    s_add_u32 s34, s34, s35
    v_add_u32 v4, s34, v4
    v_mul_u32_u24 v4, 1280, v4
    v_lshrrev_b32 v5, 4, {v(L)}
    v_lshl_add_u32 v4, v5, 3, v4
    s_mul_i32 s34, {s(S_N)}, 160
    v_add_u32 v3, s34, v4
    s_mov_b32 s8, s36
    s_mov_b32 s9, s37
    s_mov_b32 s10, {X_BYTES}
    s_mov_b32 s11, 0x20000
    s_mov_b32 s4, s64
    s_mov_b32 s5, s65
    s_mov_b32 s6, {X_BYTES}
    s_mov_b32 s7, 0x20000
    """)
    V_X = wa(SLOT[14], 0)
    V_O = 3
    for st in range(14, 19):
        k = st - 14
        sl = SLOT[st]
        vq.need(("A", st))
        for t in range(4):
            lq.need(("B", st, t))
            for nt in range(5):
                A(f"v_mfma_f32_16x16x32_bf16 {v(acc(t, nt), 4)}, {v(wa(sl, nt), 4)}, {v(hb(k % 4, t), 4)}, {v(acc(t, nt), 4)}")
            if k == 0:
                lq.issue(lds_frag(hb(0, t), 16 + t), ("B", 18, t))
        if k == 0:
            for nt in range(5):
                vq.issue(f"buffer_load_dwordx2 {v(V_X + 2 * nt, 2)}, {v(V_O)}, s[8:11], 0 offen offset:{32 * nt}", "X")
    stamp2(A, 9)
    A("s_nop 7")
    for t in range(1, 4):
        for nt in range(5):
            b, off = foff(5 * (t - 1) + nt)
            A(f"ds_write_b128 {v(V_LB)}, {v(acc(t, nt), 4)} offset:{off}")
    for t in range(1, 4):
        A(f"""
        s_sub_u32 s34, {s(S_U)}, {t}
        s_and_b32 s34, s34, 3
        s_mul_i32 s34, s34, 3072
        v_add_u32 {v(V_B + t)}, s34, {v(V_A)}
        """)
    A("s_waitcnt lgkmcnt(0)\ns_barrier")
    RD = HB
    for t in range(1, 4):
        for nt in range(5):
            b, off = foff(5 * (t - 1) + nt)
            A(f"ds_read_b128 {v(RD + (t - 1) * 20 + 4 * nt, 4)}, {v(V_B + t)} offset:{off}")
    A("s_mov_b32 s35, 0xffff0000")
    for t in range(1, 4):
        A(f"s_waitcnt lgkmcnt({15 - 5 * t})")
        for q in range(10):
            A(f"v_pk_add_f32 {v(ACC + 2 * q, 2)}, {v(ACC + 2 * q, 2)}, {v(RD + (t - 1) * 20 + 2 * q, 2)}")
    A("s_waitcnt vmcnt(0)")
    T0 = WA
    for nt in range(5):
        x0, x1 = V_X + 2 * nt, V_X + 2 * nt + 1
        r = acc(0, nt)
        A(f"""
        v_lshlrev_b32 {v(T0)}, 16, {v(x0)}
        v_and_b32 {v(T0 + 1)}, s35, {v(x0)}
        v_lshlrev_b32 {v(T0 + 2)}, 16, {v(x1)}
        v_and_b32 {v(T0 + 3)}, s35, {v(x1)}
        v_pk_add_f32 {v(r, 2)}, {v(r, 2)}, {v(T0, 2)}
        v_pk_add_f32 {v(r + 2, 2)}, {v(r + 2, 2)}, {v(T0 + 2, 2)}
        v_cvt_pk_bf16_f32 {v(r)}, {v(r)}, {v(r + 1)}
        v_cvt_pk_bf16_f32 {v(r + 1)}, {v(r + 2)}, {v(r + 3)}
        buffer_store_dwordx2 {v(r, 2)}, {v(V_O)}, s[4:7], 0 offen offset:{32 * nt}
        """)
    stamp2(A, 10)
    flush2(A)
    A("s_endpgm")

WO = 12
def m_prep(A):
    L = V_L
    A(f"""
    s_lshl_b32 {s(S_HD)}, {s(S_RB)}, 1
    s_lshr_b32 s34, {s(S_U)}, 1
    s_add_u32 {s(S_HD)}, {s(S_HD)}, s34
    s_mov_b32 s4, s60
    s_mov_b32 s5, s61
    s_mov_b32 s6, {WO_BYTES}
    s_mov_b32 s7, 0x20000
    s_mul_i32 s32, {s(S_HD)}, {20 * 1280}
    s_and_b32 s34, {s(S_U)}, 1
    s_mul_i32 s34, s34, 640
    s_add_u32 s32, s32, s34
    s_mul_i32 s33, {s(S_U)}, {WOSZ}
    s_mov_b32 s34, -1
    s_mov_b32 s35, 0xff
    s_mov_b64 exec, s[34:35]
    """)
    for r in range(20):
        A(f"""
        s_add_u32 m0, s33, {640 * r}
        s_nop 0
        buffer_load_dwordx4 {v(V_A)}, s[4:7], s32 offen lds
        s_add_u32 s32, s32, 1280
        """)
    A(f"""
    s_mov_b64 exec, -1
    v_lshrrev_b32 v92, 4, {v(L)}
    v_bfe_u32 v93, {v(L)}, 2, 2
    v_lshl_add_u32 v93, v92, 3, v93
    v_mul_u32_u24 v93, 640, v93
    v_and_b32 v94, 3, {v(L)}
    v_lshl_add_u32 v93, v94, 3, v93
    v_add_u32 v93, s33, v93
    v_cmp_le_u32 s[68:69], 2, v92
    v_cmp_eq_u32 s[56:57], 3, v92
    s_waitcnt vmcnt(0)
    """)
    for nb in range(4):
        for nt in range(5):
            for p in range(2):
                A(f"ds_read_b64_tr_b16 {v(WO + (nb * 5 + nt) * 4 + 2 * p, 2)}, v93 offset:{2560 * p + 160 * nb + 32 * nt}")
        A("s_waitcnt lgkmcnt(0)")
    for f in range(20):
        for r in range(4):
            A(f"v_cndmask_b32 {v(WO + 4 * f + r)}, {v(WO + 4 * f + r)}, 0, {'s[56:57]' if r < 2 else 's[68:69]'}")

def m_duty(A):
    L = V_L
    P = 96
    A(f"""
    s_lshr_b32 s34, {s(S_RB)}, 2
    s_add_u32 s34, s34, 11
    v_lshl_add_u32 v92, {v(L)}, 4, s34
    v_lshlrev_b32 v92, 7, v92
    v_add_u32 v92, {F1}, v92
    v_add_u32 v93, 1024, {v(V_A)}
    v_mov_b32 v94, {s(S_BIG)}
    v_cmp_gt_u32 vcc, 48, {v(L)}
    s_lshl_b32 s32, {s(S_HD)}, 4
    s_and_b32 s34, {s(S_U)}, 1
    s_lshl_b32 s34, s34, 3
    s_add_u32 s32, s32, s34
    v_cndmask_b32 v93, v94, v93, vcc
    s_mul_i32 s32, s32, {KVP_BLK}
    s_add_u32 s32, s32, {KVP}
    """)
    for h in range(2):
        A(f"""
        v_add_u32 v94, {64 * h}, {v(L)}
        v_mul_u32_u24 v95, 205, v94
        v_lshrrev_b32 v95, 10, v95
        v_mul_u32_u24 v168, 5, v95
        v_sub_u32 v94, v94, v168
        v_lshlrev_b32 v94, 3, v94
        v_lshl_add_u32 {v(170 + h)}, v95, 6, v94
        """)
    A(f"""
    s_mul_i32 s34, {s(S_U)}, 1280
    s_add_u32 s34, s34, {IMG}
    v_add_u32 v170, s34, v170
    v_add_u32 v171, s34, v171
    v_lshrrev_b32 v94, 4, {v(L)}
    v_bfe_u32 v95, {v(L)}, 2, 2
    v_lshl_add_u32 v95, v94, 3, v95
    v_lshlrev_b32 v95, 6, v95
    v_and_b32 v168, 3, {v(L)}
    v_lshl_add_u32 v95, v168, 3, v95
    v_add_u32 v172, s34, v95
    s_mul_i32 s34, {s(S_U)}, 1792
    s_add_u32 s34, s34, {EXA}
    v_add_u32 v173, s34, {v(V_A)}
    s_xor_b32 s35, {s(S_U)}, 1
    s_mul_i32 s34, s35, 1792
    s_add_u32 s34, s34, {EXA}
    v_add_u32 v174, s34, {v(V_A)}
    s_lshl_b32 s35, s35, 2
    s_add_u32 s35, s35, {LFL}
    v_mov_b32 v175, s35
    """)
    A(f"""
    s_lshr_b32 s49, {s(S_HD)}, 3
    s_bfe_u32 s50, {s(S_HD)}, 0x20001
    s_and_b32 s51, {s(S_HD)}, 1
    s_mul_i32 s51, s51, 20
    s_and_b32 s52, {s(S_U)}, 1
    s_mul_i32 s52, s52, 80
    s_mul_i32 s49, s49, 5
    s_add_u32 s52, s52, s49
    s_mul_i32 s52, s52, 5120
    s_lshl_b32 s50, s50, 8
    s_add_u32 s52, s52, s50
    s_add_u32 s52, s52, {MF}
    v_lshrrev_b32 v94, 4, {v(L)}
    v_lshl_add_u32 v94, v94, 2, s51
    v_and_b32 v95, 15, {v(L)}
    v_lshlrev_b32 v95, 4, v95
    v_lshrrev_b32 v168, 3, v94
    v_mul_u32_u24 v168, 5120, v168
    v_and_b32 v94, 7, v94
    v_lshl_add_u32 v168, v94, 1, v168
    v_add_u32 v176, v168, v95
    s_add_u32 s51, s51, 16
    s_lshr_b32 s53, s51, 3
    s_mul_i32 s53, s53, 5120
    s_and_b32 s51, s51, 7
    s_lshl_b32 s51, s51, 1
    s_add_u32 s53, s53, s51
    v_add_u32 v177, s53, v95
    v_mov_b32 v94, {s(S_BIG)}
    v_cmp_gt_u32 vcc, 16, {v(L)}
    s_mul_i32 s34, {s(S_HD)}, 40
    s_add_u32 s34, s34, {ZB - 36 * 8}
    v_lshlrev_b32 v178, 3, {v(L)}
    v_cndmask_b32 v177, v94, v177, vcc
    v_add_u32 v178, s34, v178
    """)
    stamp2(A, 1)
    poll(A, "L_m_kv", "v92", 16)
    stamp2(A, 2)
    for i in range(8):
        A(f"buffer_load_dwordx4 {v(P + 8 * i, 4)}, {v(V_A)}, s[12:15], s32 offen sc1")
        A(f"buffer_load_dwordx4 {v(P + 8 * i + 4, 4)}, v93, s[12:15], s32 offen sc1")
        if i < 7: A(f"s_add_u32 s32, s32, {KVP_BLK}")
    for step in (4, 2, 1):
        A(f"s_waitcnt vmcnt({0 if step < 4 else 0})") if step == 4 else None
        for i in range(step):
            for q in range(4):
                A(f"v_pk_add_f32 {v(P + 8 * i + 2 * q, 2)}, {v(P + 8 * i + 2 * q, 2)}, {v(P + 8 * (i + step) + 2 * q, 2)}")
    A(f"""
    ds_write_b128 v173, {v(P, 4)}
    s_mov_b32 s34, -1
    s_mov_b32 s35, 0xffff
    s_mov_b64 exec, s[34:35]
    ds_write_b128 v173, {v(P + 4, 4)} offset:1024
    s_mov_b64 exec, -1
    s_waitcnt lgkmcnt(0)
    """)
    A(lds_set_text(v(V_FL), F_EX))
    lds_wait(A, "L_m_ex", "v175", F_EX)
    A(f"""
    ds_read_b128 {v(P + 8, 4)}, v174
    ds_read_b128 {v(P + 12, 4)}, v174 offset:1024
    s_waitcnt lgkmcnt(0)
    """)
    for q in range(4):
        A(f"v_pk_add_f32 {v(P + 2 * q, 2)}, {v(P + 2 * q, 2)}, {v(P + 8 + 2 * q, 2)}")
    for q in range(4):
        A(f"v_cvt_pk_bf16_f32 {v(P + 16 + q)}, {v(P + 2 * q)}, {v(P + 2 * q + 1)}")
    A(f"""
    ds_write_b64 v170, {v(P + 16, 2)}
    s_mov_b32 s34, -1
    s_mov_b32 s35, 15
    s_mov_b64 exec, s[34:35]
    ds_write_b64 v171, {v(P + 18, 2)}
    s_mov_b32 s34, 0
    s_mov_b32 s35, 0x1f0
    s_mov_b64 exec, s[34:35]
    buffer_store_dwordx2 {v(P + 18, 2)}, v178, s[12:15], 0 offen sc1
    s_mov_b64 exec, -1
    v_lshrrev_b32 v94, 4, {v(L)}
    v_cmp_le_u32 s[68:69], 2, v94
    v_cmp_eq_u32 s[56:57], 3, v94
    s_waitcnt lgkmcnt(0)
    """)
    IM = P + 24
    for tile in range(2):
        for p in range(2):
            A(f"ds_read_b64_tr_b16 {v(IM + 4 * tile + 2 * p, 2)}, v172 offset:{256 * p + 32 * tile}")
    A("s_waitcnt lgkmcnt(0)")
    for tile in range(2):
        for r in range(4):
            A(f"v_cndmask_b32 {v(IM + 4 * tile + r)}, {v(IM + 4 * tile + r)}, 0, {'s[56:57]' if r < 2 else 's[68:69]'}")
    A("s_nop 1")
    DM = [P + 32, 180]
    def mm(nb):
        for tile in range(2):
            for nt in range(5):
                A(f"v_mfma_f32_16x16x32_bf16 {v(DM[nb & 1] + (tile * 5 + nt) * 4, 4)}, {v(IM + 4 * tile, 4)}, {v(WO + (nb * 5 + nt) * 4, 4)}, 0")
    def st(nb):
        for tile in range(2):
            for nt in range(5):
                d = DM[nb & 1] + (tile * 5 + nt) * 4
                A(f"v_cvt_pk_bf16_f32 {v(d)}, {v(d)}, {v(d + 1)}\nv_cvt_pk_bf16_f32 {v(d + 1)}, {v(d + 2)}, {v(d + 3)}")
        A("s_add_u32 s53, s52, 4096")
        for tile in range(2):
            for nt in range(5):
                d = DM[nb & 1] + (tile * 5 + nt) * 4
                so = "s52" if nt < 4 else "s53"
                off = f" offset:{1024 * nt}" if nt < 4 else ""
                A(f"buffer_store_dwordx2 {v(d, 2)}, {v(176 + tile)}, s[12:15], {so} offen{off} sc1")
        A(f"s_add_u32 s52, s52, {20 * 5120}")
    mm(0); mm(1); st(0); A("s_nop 1"); mm(2); st(1); A("s_nop 1"); mm(3); st(2); A("s_nop 7"); st(3)
    A(f"""
    s_lshl_b32 s34, {s(S_RB)}, 2
    s_add_u32 s34, s34, {s(S_U)}
    s_lshl_b32 s34, s34, 7
    s_add_u32 s34, s34, {F2}
    v_mov_b32 v94, 0
    v_mov_b32 v95, 1
    s_waitcnt vmcnt(0)
    s_mov_b64 exec, 1
    buffer_store_dword v95, v94, s[12:15], s34 offen sc1
    s_mov_b64 exec, -1
    """)
    stamp2(A, 3)

def aux(A):
    L = V_L
    PQ = 12; ZF = 92; DEN = 112; TT = 128
    def pq(k, t): return PQ + (k * 4 + t) * 4
    A(f"s_cmp_lg_u32 {s(S_TYPE)}, 3\ns_cbranch_scc1 L_p2_nom")
    m_duty(A)
    A.label("L_p2_nom")
    A(f"""
    s_lshr_b32 s34, {s(S_R)}, 1
    s_lshl_b32 s34, s34, 4
    s_lshr_b32 s35, {s(S_U)}, 1
    s_add_u32 s34, s34, s35
    s_add_u32 s34, s34, 9
    s_lshl_b32 s34, s34, 7
    s_add_u32 s34, s34, {F1}
    v_mov_b32 v92, s34
    """)
    stamp2(A, 4)
    poll(A, "L_p2_q", "v92", 1)
    stamp2(A, 5)
    A(f"""
    s_mul_i32 s34, {s(S_R)}, 20
    s_mul_i32 s35, {s(S_U)}, 5
    s_add_u32 s34, s34, s35
    s_lshl_b32 s32, s34, 12
    s_add_u32 s32, s32, {PQF}
    """)
    for k in range(5):
        for t in range(4):
            A(f"buffer_load_dwordx4 {v(pq(k, t), 4)}, {v(V_B + t)}, s[12:15], s32 offen")
        if k < 4: A("s_add_u32 s32, s32, 4096")
    A(f"""
    v_mov_b32 v93, {LFL}
    s_cmp_lg_u32 {s(S_U)}, 0
    s_cbranch_scc1 L_p2_mw
    s_lshr_b32 s34, {s(S_N)}, 2
    v_lshl_add_u32 v92, {v(L)}, 1, s34
    v_lshlrev_b32 v92, 7, v92
    v_add_u32 v92, {F2}, v92
    """)
    poll(A, "L_p2_m", "v92", 32)
    A(lds_set_text("v93", F_MSEEN))
    A("s_branch L_p2_mok")
    A.label("L_p2_mw")
    lds_wait(A, "L_p2_ml", "v93", F_MSEEN)
    A.label("L_p2_mok")
    stamp2(A, 6)
    A(f"""
    v_lshrrev_b32 v144, 4, {v(L)}
    v_mul_u32_u24 v145, 80, v144
    s_mul_i32 s34, {s(S_U)}, 320
    s_add_u32 s34, s34, {ZB}
    """)
    for k in range(5):
        A(f"buffer_load_dwordx4 {v(ZF + 4 * k, 4)}, v145, s[12:15], s34 offen offset:{16 * k}")
    A(f"""
    v_bfe_u32 v146, {v(L)}, 2, 2
    v_cmp_eq_u32 s[56:57], v146, v144
    v_and_b32 v146, 3, {v(L)}
    v_cmp_eq_u32 s[68:69], 0, v146
    v_cmp_eq_u32 s[70:71], 1, v146
    s_nop 1
    s_and_b64 s[68:69], s[68:69], s[56:57]
    s_and_b64 s[56:57], s[70:71], s[56:57]
    s_waitcnt vmcnt(0)
    """)
    for k in range(5):
        for r in range(4):
            hh = 0 if k < 2 else (1 if k > 2 else (0 if r < 2 else 1))
            A(f"v_cndmask_b32 {v(ZF + 4 * k + r)}, 0, {v(ZF + 4 * k + r)}, {'s[68:69]' if hh == 0 else 's[56:57]'}")
    A("s_nop 1")
    for k in range(5):
        for t in range(4):
            c = "0" if k == 0 else v(DEN + 4 * t, 4)
            A(f"v_mfma_f32_16x16x32_bf16 {v(DEN + 4 * t, 4)}, {v(ZF + 4 * k, 4)}, {v(pq(k, t), 4)}, {c}")
    A(f"s_mov_b32 s34, {hex(0x358637bd)}\ns_nop 6")
    for t in range(4):
        for hh in range(2):
            A(f"v_add_f32 {v(DEN + 4 * t + hh)}, s34, {v(DEN + 4 * t + hh)}")
    for t in range(4):
        for hh in range(2):
            A(f"v_rcp_f32 {v(DEN + 4 * t + hh)}, {v(DEN + 4 * t + hh)}")
    A("s_mov_b32 s35, 0xffff0000")
    stamp2(A, 7)
    for k in range(5):
        for t in range(4):
            r0 = pq(k, t)
            T = TT + 8 * ((k * 4 + t) & 1)
            for r in range(4):
                A(f"v_lshlrev_b32 {v(T + 2 * r)}, 16, {v(r0 + r)}\nv_and_b32 {v(T + 2 * r + 1)}, s35, {v(r0 + r)}")
            for r in range(4):
                hh = 0 if k < 2 else (1 if k > 2 else (0 if r < 2 else 1))
                sel = "op_sel_hi:[1,0]" if hh == 0 else "op_sel:[0,1] op_sel_hi:[1,1]"
                A(f"v_pk_mul_f32 {v(T + 2 * r, 2)}, {v(T + 2 * r, 2)}, {v(DEN + 4 * t, 2)} {sel}")
            for r in range(4):
                A(f"v_cvt_pk_bf16_f32 {v(r0 + r)}, {v(T + 2 * r)}, {v(T + 2 * r + 1)}")
    stamp2(A, 8)
    lds_wait(A, "L_p2_fr", v(V_FL), F_FREE)
    for k in range(5):
        for t in range(4):
            b, off = foff(4 * k + t)
            A(f"ds_write_b128 {v(V_LB + b)}, {v(pq(k, t), 4)} offset:{off}")
    A("s_waitcnt lgkmcnt(0)")
    A(lds_set_text(v(V_FL), F_READY))
    A("s_waitcnt lgkmcnt(0)")
    stamp2(A, 9)
    flush2(A)
    A("s_endpgm")

def side_entry(A, fused):
    L = V_L
    if fused:
        A("v_mov_b32 v92, 0")
        A(f"""
        s_mov_b32 s71, 0
        L_p2_cnt_spin:
        buffer_load_dword v93, v92, s[16:19], 0 offen sc1
        s_waitcnt vmcnt(0)
        v_readfirstlane_b32 s34, v93
        s_add_u32 s71, s71, 1
        s_cmp_ge_u32 s34, 256
        s_cbranch_scc1 L_p2_cnt_ok
        s_cmp_lt_u32 s71, {BOUND}
        s_cbranch_scc1 L_p2_cnt_spin
        L_p2_cnt_ok:
        v_lshlrev_b32 v92, 2, {v(L)}
        v_add_u32 v92, {LFL}, v92
        v_mov_b32 v93, 0
        ds_write_b32 v92, v93
        """)
    common(A)
    A(f"s_cmp_lt_u32 {s(S_W)}, 4\ns_cbranch_scc1 L_p2_side_b")
    m_prep(A)
    A.label("L_p2_side_b")
    A("s_waitcnt lgkmcnt(0)\ns_barrier")

def body(A):
    A.label("L_p2_go")
    stamp2(A, 0)
    A(f"s_cmp_ge_u32 {s(S_W)}, 4\ns_cbranch_scc1 L_p2_aux")
    compute(A)
    A.label("L_p2_aux")
    aux(A)

def tail(A, role):
    if role == "main":
        common(A)
        body(A)
    else:
        side_entry(A, True)
        A("s_branch L_p2_go")

def gen_standalone(A, KN):
    L = V_L
    A(f".globl {KN}\n.p2align 8\n.type {KN},@function\n{KN}:")
    A(f"s_cmp_ge_u32 s2, 256\ns_cbranch_scc1 L_end_{KN}")
    A(f"""
    s_load_dwordx4 s[36:39], s[0:1], 0
    s_load_dwordx4 s[44:47], s[0:1], 64
    s_load_dwordx2 s[60:61], s[0:1], 16
    s_load_dwordx2 s[64:65], s[0:1], 56
    v_and_b32 {v(L)}, 63, v0
    v_lshrrev_b32 v2, 6, v0
    s_nop 0
    v_readfirstlane_b32 {s(S_W)}, v2
    """)
    p1.decode(A)
    A(f"""
    s_waitcnt lgkmcnt(0)
    s_mov_b32 s12, s46
    s_mov_b32 s13, s47
    s_mov_b32 s14, {WS_USED}
    s_mov_b32 s15, 0x20000
    v_lshlrev_b32 v92, 2, {v(L)}
    v_add_u32 v92, {LFL}, v92
    v_mov_b32 v93, 0
    ds_write_b32 v92, v93
    s_mov_b32 {s(S_TYPE)}, 2
    s_cmp_eq_u32 {s(p1.S_CIDX)}, 15
    s_cbranch_scc0 L_k2_main
    s_mov_b32 {s(S_TYPE)}, 3
    """)
    side_entry(A, False)
    A("s_branch L_p2_go")
    A.label("L_k2_main")
    common(A)
    A("s_waitcnt lgkmcnt(0)\ns_barrier")
    body(A)
    A.label(f"L_end_{KN}")
    A("s_endpgm")
```

```python
import sys
from asmlib import Asm, check_hazards, Prof
from common2 import *
import p1

def header(launches):
    h = open('cdna_kernels/' + NAME + '.s.ref').read().split('\n')
    out = []
    for ln in h:
        if ln.startswith('; @launch') or ln.startswith('; Override') or ln.startswith('; grid='): continue
        if not ln.startswith(';'): break
        out.append(ln)
    for k, g, b, lds in launches:
        if k == NAME + "_kernel":
            out.append(f"; @launch grid=({g},1,1) block=({b},1,1) lds={lds}")
        else:
            out.append(f"; @launch kernel={k} grid=({g},1,1) block=({b},1,1) lds={lds}")
    return "\n".join(out) + "\n"

def build(path, mode):
    A = Asm()
    A('.amdgcn_target "amdgcn-amd-amdhsa--gfx950"\n.text')
    launches, descs = [], []
    if mode in ("p1", "split"):
        def tail(A, role):
            p1.lflush(A); Prof.flush(A, 12, "s3", 6); A("s_endpgm")
        p1.gen_p1(A, "k1_kernel", tail)
        launches.append(("k1_kernel", 256, 512, p1.LDS_BYTES)); descs.append(kernel_desc("k1_kernel", 256, 96))
    if mode == "split":
        import p2
        p2.gen_standalone(A, "k2_kernel")
        launches.append(("k2_kernel", 256, 512, p1.LDS_BYTES)); descs.append(kernel_desc("k2_kernel", 256, 96))
    if mode == "fused":
        import p2
        kn = NAME + "_kernel"
        p1.gen_p1(A, kn, p2.tail)
        launches.append((kn, 256, 512, p1.LDS_BYTES)); descs.append(kernel_desc(kn, 256, 96))
    probs = check_hazards(A.lines)
    for p in probs: print("HAZARD", p)
    txt = header(launches) + A.text() + '.section .rodata,"a"\n.p2align 6\n' + "\n.p2align 6\n".join(descs)
    open(path, "w").write(txt)
    return probs

if __name__ == "__main__":
    opts = sys.argv[3:]
    if "prof" in opts: Prof.on = True
    if "nopre" in opts: p1.PRELOAD = False
    if "lprof" in opts: p1.LPROF = True
    if "prof2" in opts:
        import p2
        p2.PROF2 = True
    build(sys.argv[1], sys.argv[2])
```

```python
from asmlib import Asm, v, a, s, Prof
from common2 import *

ST = " sc1"
WSLOT = 24832
SEGB = 12288 + 128
XBASE = 4 * WSLOT
XSLOT = 16384
CSB = XBASE + 3 * XSLOT
LDS_BYTES = 163840
LFL = LDS_BYTES - 256
ROLES = 0xF876AE549D32CB10

V_L = 1
V_CS = 92; V_DX = 98; V_WR = 100; V_XR = 104; V_DW = 108; V_WF = 112; V_XF = 136; V_ACC = 160
V_WR2 = 152
V_L16 = 155
V_PL = 52
V_ROW = 32

S_W = 3; S_RB = 20; S_CIDX = 21; S_TYPE = 22; S_C = 23
S_WSO = 24; S_WSTEP = 25; S_WDST = 26; S_CSO = 27; S_XDST = 28; S_XWRAP = 29; S_STO = 30; S_IT = 31
S_WWRAP = 48; S_T = 49; S_SH = 50; S_TB = 51; S_ONES = 52; S_XD = 53; S_XSTEP = 54
S_WSO2 = 55; S_XD2 = 56; S_DUTY = 57; S_R = 58; S_N = 59; S_B = 66; S_P = 67
PRELOAD = True
CODEPF = True
V_PF = 86

def acc(T, t): return V_ACC + (T * 3 + t) * 16
def wf(st, t): return V_WF + st * 12 + t * 4
def xf(st, T): return V_XF + st * 8 + T * 4
def rng(b, n): return range(b, b + n)

class LQ:
    def __init__(self, A): self.A = A; self.q = []
    def issue(self, text, regs):
        self.A(text); self.q.append(set(regs))
    def need(self, regs):
        regs = set(regs); last = -1
        for i, r in enumerate(self.q):
            if r & regs: last = i
        if last >= 0:
            self.A(f"s_waitcnt lgkmcnt({len(self.q) - 1 - last})")
            self.q = self.q[last + 1:]
    def drain(self): self.q = []

def reads_for(b, st, j, k2):
    R = []
    it, P = j >> 1, j & 1
    kap = 2 * P + k2
    for T in range(2):
        R.append((f"ds_read_b128 {v(xf(st, T), 4)}, {v(V_XR + kap)} offset:{(it % 3) * XSLOT + T * 4096}", rng(xf(st, T), 4)))
    sg = j % 4
    base = V_WR if sg < 2 else V_WR2
    for t in range(b):
        for p in range(2):
            off = (sg & 1) * WSLOT + (16 * k2 + 4 * p) * 384
            R.append((f"ds_read_b64_tr_b16 {v(wf(st, t) + 2 * p, 2)}, {v(base + t)} offset:{off}", rng(wf(st, t) + 2 * p, 2)))
    return R

def spread(items, n):
    out, k = [], 0
    for i in range(n):
        m = (len(items) - k + (n - i) - 1) // (n - i)
        out.append(items[k:k + m]); k += m
    return out

def kstep(A, lq, b, st, reads, extra, duty, waits=True):
    mf = [(T, t) for t in range(b) for T in range(2)]
    nr = max(1, len(mf) - 2)
    R = spread(list(reads), nr) + [[]] * (len(mf) - nr)
    E = spread(list(extra), len(mf))
    for n, (T, t) in enumerate(mf):
        if waits:
            lq.need(list(rng(wf(st, t), 4)) + list(rng(xf(st, T), 4)))
        A(f"v_mfma_f32_32x32x16_bf16 {v(acc(T, t), 16)}, {v(wf(st, t), 4)}, {v(xf(st, T), 4)}, {v(acc(T, t), 16)}")
        for r in R[n]: lq.issue(*r)
        for e in E[n]:
            e() if callable(e) else A(e)
    if duty is not None:
        lab = A.uid("L_cs")
        A(f"s_cmp_lg_u32 {s(S_DUTY)}, {duty}\ns_cbranch_scc1 {lab}")
        for t in range(b):
            for j in range(4):
                A(f"v_dot2c_f32_bf16 {v(V_CS + t)}, {s(S_ONES)}, {v(wf(st, t) + j)}")
        A.label(lab)

def dma_batch(j):
    it, P = j >> 1, j & 1
    L = []
    L.append(f"s_add_u32 m0, {s(S_WDST)}, {(j % 4) * WSLOT}\ns_nop 0")
    for q in range(3):
        L.append(f"buffer_load_dwordx4 {v(V_DW + q)}, {s(4, 4)}, {s(S_WSO)} offen offset:{1024 * q} lds")
    g, half = (it + 2, 1) if P == 0 else (it + 3, 0)
    L.append(f"s_add_u32 m0, {s(S_XDST)}, {(g % 3) * XSLOT + half * 1024}\ns_add_u32 {s(S_WSO)}, {s(S_WSO)}, {s(S_WSTEP)}")
    L.append(f"buffer_load_dwordx4 {v(V_DX + half)}, {s(8, 4)}, {s(S_XD)} offen lds")
    if P == 0:
        L.append(f"s_add_u32 {s(S_XD)}, {s(S_XD)}, {s(S_XSTEP)}")
    if j == 19 and PRELOAD:
        L.append(f"s_add_u32 m0, {s(S_XDST)}, 1024\ns_nop 0")
        L.append(f"buffer_load_dwordx4 {v(V_DX + 1)}, {s(8, 4)}, {s(S_XD)} offen lds")
    return L

LPROF = False
def lstamp(A, it, k):
    if not LPROF: return
    A(f"s_memtime s[90:91]\ns_waitcnt lgkmcnt(0)\nv_writelane_b32 v95, s90, {2 * it + k}")

EPROF = False
def estamp(A, k):
    if not EPROF: return
    A(f"s_memtime s[70:71]\ns_waitcnt lgkmcnt(0)\nv_writelane_b32 v0, s70, {k}")

def lflush(A):
    if not LPROF: return
    A(f"""
    s_lshl_b32 s70, s2, 3
    s_add_u32 s70, s70, s3
    s_lshl_b32 s70, s70, 8
    s_add_u32 s70, s70, 0x1500000
    s_mov_b32 s14, 0x2000000
    v_lshlrev_b32 v0, 2, {v(V_L)}
    buffer_store_dword v95, v0, s[12:15], s70 offen
    """)

def lines(fn):
    B = Asm(); fn(B)
    out, pend, grp = [], "", False
    for ln in B.lines:
        if ln == ";[": grp = True
        elif ln == ";]": grp = False; out.append(pend.rstrip()); pend = ""
        elif grp or ln.endswith(":"): pend += ln + "\n"
        else: out.append(pend + ln); pend = ""
    if pend: out.append(pend.rstrip())
    return out

def main_loop(A, b, slow):
    lq = LQ(A)
    for txt, regs in reads_for(b, 0, 0, 0):
        lq.q.append(set(regs))
    X = {}
    def add(j, h, L): X.setdefault((j, h), []).extend(L)
    st = lines(row_stats)
    n4 = (len(st) + 3) // 4
    add(0, 1, st[:n4]); add(1, 0, st[n4:2 * n4]); add(1, 1, st[2 * n4:3 * n4]); add(2, 0, st[3 * n4:])
    def w0(name, fn):
        B = Asm(); B(f"s_cmp_lg_u32 {s(S_W)}, 0\ns_cbranch_scc1 {name}"); fn(B); B.label(name)
        return ["\n".join(B.lines)]
    for d in range(5):
        def pub(B, d=d):
            lab = f"L_pub{b}_{d}"
            B(f"s_cmp_lg_u32 {s(S_DUTY)}, {d}\ns_cbranch_scc1 {lab}")
            for t in range(3):
                B(f"""
                v_mov_b32 v9, {v(V_CS + t)}
                s_nop 1
                v_permlane32_swap_b32 {v(V_CS + t)}, v9
                s_nop 1
                v_add_f32 v9, v9, {v(V_CS + t)}
                v_or_b32 {v(12 + t)}, 1, v9
                """)
            B(f"""
            v_and_b32 v6, 31, {v(V_L)}
            v_lshlrev_b32 v6, 4, v6
            buffer_store_dwordx3 v[12:14], v6, s[12:15], {s(S_CSO)} offen sc1
            """)
            B.label(lab)
        B = Asm(); pub(B)
        add(2 * d + 2, 1, ["\n".join(B.lines)])
    add(5, 0, [f"s_sub_u32 {s(S_XD)}, {s(S_XD)}, {s(S_XWRAP)}"])
    add(6, 0, [f"s_sub_u32 {s(S_WSO)}, {s(S_WSO)}, {s(S_WWRAP)}"])
    add(10, 1, w0(f"L_ci{b}", lambda B: cnt_issue(B, V_PL)))
    def chk_cnt(B):
        B("s_waitcnt vmcnt(4)")
        check(slow, f"L_cnt{b}", lambda C: cnt_cond(C, V_PL), lambda C: cnt_issue(C, V_PL))(B)
        if PRELOAD: fw_issue(B, V_PL)
    add(12, 0, w0(f"L_cc{b}", chk_cnt))
    if PRELOAD:
        def chk_fw(B):
            B("s_waitcnt vmcnt(12)")
            check(slow, f"L_fw{b}", lambda C: fw_cond(C, V_PL, FW_ALL), lambda C: fw_issue(C, V_PL))(B)
        add(15, 0, w0(f"L_fc{b}", chk_fw))
        add(15, 0, [f"s_mov_b32 {s(S_XD)}, {s(S_XD2)}\ns_mov_b32 {s(S_XSTEP)}, 4096",
                    "s_mov_b32 s8, s12\ns_mov_b32 s9, s13\ns_mov_b32 s10, s14",
                    f"v_mov_b32 {v(V_DX)}, {v(V_L16)}\nv_add_u32 {v(V_DX + 1)}, 1024, {v(V_L16)}"])
        add(16, 0, [f"s_mov_b32 {s(S_WSO)}, {s(S_WSO2)}\ns_mov_b32 {s(S_WSTEP)}, 6144",
                    "s_mov_b32 s4, s12\ns_mov_b32 s5, s13\ns_mov_b32 s6, s14"] +
                   [f"v_mov_b32 {v(V_DW + q)}, {v(V_L16)}" for q in range(3)])
    else:
        add(15, 0, [f"s_mov_b32 {s(S_XD)}, 0x7f000000\ns_mov_b32 {s(S_XSTEP)}, 0"])
        add(16, 0, [f"s_mov_b32 {s(S_WSO)}, 0x7f000000\ns_mov_b32 {s(S_WSTEP)}, 0"])
    if CODEPF:
        add(14, 1, [code_touch()])
    el = lines(epi_loads)
    add(18, 0, el[:len(el) // 2]); add(18, 1, el[len(el) // 2:])
    for j in range(20):
        it = j >> 1
        duty = it if it < 5 else None
        kstep(A, lq, b, 0, reads_for(b, 1, j, 1), X.get((j, 0), []), duty)
        A("s_waitcnt vmcnt(8) lgkmcnt(0)" if j < 19 else "s_waitcnt lgkmcnt(0)")
        lq.drain()
        A("s_barrier")
        lstamp(A, it, j & 1)
        nxt = reads_for(b, 0, j + 1, 0) if j < 19 else []
        E = dma_batch(j) + X.get((j, 1), [])
        kstep(A, lq, b, 1, nxt, E, duty, waits=False)

def code_touch():
    return f"s_mov_b64 exec, 3\nglobal_load_dword {v(V_PF + 2)}, {v(V_PF, 2)}, off\ns_mov_b64 exec, -1"

def code_prefetch(A, KN):
    A(f"""
    s_getpc_b64 s[68:69]
    L_pc_{KN}:
    s_lshr_b32 s32, s2, 3
    s_lshl_b32 s32, s32, 3
    s_add_u32 s32, s32, {s(S_W)}
    s_lshl_b32 s32, s32, 1
    v_add_u32 {v(V_PF + 2)}, s32, {v(V_L)}
    v_lshlrev_b32 {v(V_PF + 2)}, 7, {v(V_PF + 2)}
    v_min_u32 {v(V_PF + 2)}, L_end_{KN}-L_pc_{KN}, {v(V_PF + 2)}
    v_add_co_u32 {v(V_PF)}, vcc, s68, {v(V_PF + 2)}
    v_mov_b32 {v(V_PF + 1)}, s69
    s_nop 0
    v_addc_co_u32 {v(V_PF + 1)}, vcc, 0, {v(V_PF + 1)}, vcc
    """)
    A(code_touch())

def decode(A):
    A(f"""
    s_and_b32 s32, s2, 7
    s_lshr_b32 s33, s2, 3
    s_and_b32 s34, s32, 1
    s_lshl_b32 {s(S_RB)}, s34, 3
    s_and_b32 s34, s33, 7
    s_add_u32 {s(S_RB)}, {s(S_RB)}, s34
    s_lshr_b32 s34, s32, 1
    s_lshl_b32 s34, s34, 2
    s_lshr_b32 s35, s33, 3
    s_add_u32 s34, s34, s35
    s_lshl_b32 s34, s34, 2
    s_mov_b32 s68, {hex(ROLES & 0xffffffff)}
    s_mov_b32 s69, {hex(ROLES >> 32)}
    s_lshr_b64 s[68:69], s[68:69], s34
    s_and_b32 {s(S_CIDX)}, s68, 15
    s_lshl_b32 {s(S_R)}, s32, 2
    s_and_b32 s34, s33, 3
    s_add_u32 {s(S_R)}, {s(S_R)}, s34
    s_lshr_b32 {s(S_N)}, s33, 2
    s_lshr_b32 {s(S_P)}, {s(S_RB)}, 3
    """)

def zero_and_row(A, side):
    L = V_L
    A(f"""
    s_lshl_b32 s32, s2, 3
    s_add_u32 s32, s32, {s(S_W)}
    s_mul_i32 s70, s32, 1280
    s_lshl_b32 s32, s32, 3
    s_add_u32 s32, s32, {STAT}
    s_add_u32 s33, s32, 4
    s_lshl_b32 s34, {s(S_RB)}, 4
    s_add_u32 s34, s34, {s(S_CIDX)}
    s_lshl_b32 s34, s34, 7
    s_add_u32 s34, s34, {F1}
    s_lshl_b32 s35, {s(S_N)}, 5
    s_add_u32 s35, s35, {s(S_R)}
    s_lshl_b32 s35, s35, 7
    s_add_u32 s35, s35, {F2}
    s_cmp_eq_u32 {s(S_W)}, 0
    s_cselect_b32 s34, s34, s32
    s_cselect_b32 s35, s35, s33
    v_mov_b32 v6, s32
    v_writelane_b32 v6, s33, 1
    v_writelane_b32 v6, s34, 2
    v_writelane_b32 v6, s35, 3
    v_mov_b32 v8, 0
    v_mov_b32 v9, 0
    v_mov_b32 v10, 0
    v_mov_b32 v11, 0
    s_mov_b64 exec, 15
    buffer_store_dword v8, v6, s[12:15], 0 offen sc1
    s_mov_b64 exec, -1
    """)
    if not side:
        lab = A.uid("L_nz")
        A(f"""
        s_mul_i32 s33, {s(S_P)}, 5
        s_add_u32 s33, s33, {s(S_DUTY)}
        s_mul_i32 s34, {s(S_CIDX)}, 10
        s_add_u32 s33, s33, s34
        s_lshl_b32 s33, s33, 2
        s_lshr_b32 s34, {s(S_W)}, 1
        s_add_u32 s33, s33, s34
        s_lshl_b32 s33, s33, 9
        s_add_u32 {s(S_CSO)}, s33, {CSP}
        s_cmp_gt_u32 {s(S_DUTY)}, 4
        s_cbranch_scc1 {lab}
        v_lshlrev_b32 v7, 4, {v(L)}
        s_mov_b64 exec, 0xffffffff
        buffer_store_dwordx4 v[8:11], v7, s[12:15], {s(S_CSO)} offen sc1
        s_mov_b64 exec, -1
        {lab}:
        """)
    if not side:
        lab = A.uid("L_nk")
        A(f"""
        s_cmp_lg_u32 {s(S_TYPE)}, 2
        s_cbranch_scc1 {lab}
        s_lshl_b32 s33, {s(S_C)}, 3
        s_add_u32 s33, s33, {s(S_W)}
        s_lshl_b32 s33, s33, 4
        s_add_u32 s33, s33, {s(S_RB)}
        s_mul_i32 s33, s33, {KVP_BLK}
        s_add_u32 s33, s33, {KVP}
        v_lshlrev_b32 v7, 4, {v(L)}
        s_mov_b32 s34, -1
        s_mov_b32 s35, 0xffff
        buffer_store_dwordx4 v[8:11], v7, s[12:15], s33 offen sc1
        s_mov_b64 exec, s[34:35]
        buffer_store_dwordx4 v[8:11], v7, s[12:15], s33 offen offset:1024 sc1
        s_mov_b64 exec, -1
        {lab}:
        """)
    A(f"""
    v_lshlrev_b32 v6, 4, {v(L)}
    v_lshlrev_b32 v7, 2, {v(L)}
    buffer_load_dwordx4 {v(V_ROW, 4)}, v6, s[8:11], s70 offen
    buffer_load_dword {v(V_ROW + 4)}, v7, s[8:11], s70 offen offset:1024
    """)

def count_in(A):
    lab = A.uid("L_cnt")
    A(f"""
    s_cmp_lg_u32 {s(S_W)}, 0
    s_cbranch_scc1 {lab}
    v_mov_b32 v6, 0
    v_mov_b32 v7, 1
    s_mov_b64 exec, 1
    buffer_atomic_add v7, v6, s[16:19], 0 offen sc1
    s_mov_b64 exec, -1
    {lab}:
    """)

def row_stats(A):
    A("v_mov_b32 v8, 0\nv_mov_b32 v9, 0")
    for i in range(5):
        A(f"v_dot2c_f32_bf16 v8, {s(S_ONES)}, {v(V_ROW + i)}")
        A(f"v_dot2c_f32_bf16 v9, {v(V_ROW + i)}, {v(V_ROW + i)}")
    A("s_nop 2")
    for sh in (8, 4, 2, 1):
        A(f"v_add_f32_dpp v8, v8, v8 row_ror:{sh} row_mask:0xf bank_mask:0xf")
        A(f"v_add_f32_dpp v9, v9, v9 row_ror:{sh} row_mask:0xf bank_mask:0xf")
        A("s_nop 0")
    for op in ("v_permlane16_swap_b32", "v_permlane32_swap_b32"):
        A(f"""
        v_mov_b32 v10, v8
        v_mov_b32 v11, v9
        s_nop 1
        {op} v8, v10
        {op} v9, v11
        s_nop 1
        v_add_f32 v8, v8, v10
        v_add_f32 v9, v9, v11
        """)
    A(f"""
    s_mov_b32 s34, 0x3acccccd
    s_mov_b32 s35, 0x3727c5ac
    v_mul_f32 v8, s34, v8
    v_mul_f32 v9, s34, v9
    v_fma_f32 v9, -v8, v8, v9
    v_max_f32 v9, 0, v9
    v_cvt_pk_bf16_f32 v10, v8, v9
    v_lshlrev_b32 v8, 16, v10
    v_and_b32 v9, 0xffff0000, v10
    v_add_f32 v9, s35, v9
    v_cvt_pk_bf16_f32 v10, v9, v9
    v_lshlrev_b32 v10, 16, v10
    v_sqrt_f32 v10, v10
    s_nop 0
    v_cvt_pk_bf16_f32 v10, v10, v10
    v_lshlrev_b32 v10, 16, v10
    v_rcp_f32 v9, v10
    s_lshl_b32 s32, s2, 3
    s_add_u32 s32, s32, {s(S_W)}
    s_lshl_b32 s32, s32, 3
    s_add_u32 s32, s32, {STAT}
    v_mov_b32 v6, 0
    ;[
    s_mov_b64 exec, 1
    buffer_store_dwordx2 v[8:9], v6, s[12:15], s32 offen sc1
    s_mov_b64 exec, -1
    ;]
    """)

FW_ALL = (1 << 54) - 1

def fw_issue(A, reg):
    A(f"v_lshlrev_b32 v6, 7, {v(V_L)}\nv_add_u32 v6, {FW}, v6\nbuffer_load_dword {v(reg)}, v6, s[12:15], 0 offen sc1")
def fw_cond(A, reg, mask):
    A(f"""
    v_cmp_ne_u32 s[68:69], 0, {v(reg)}
    s_mov_b32 s34, {hex(mask & 0xffffffff)}
    s_mov_b32 s35, {hex(mask >> 32)}
    s_and_b64 s[68:69], s[68:69], s[34:35]
    s_cmp_eq_u64 s[68:69], s[34:35]
    """)
def cnt_issue(A, reg):
    A(f"v_mov_b32 v6, 0\nbuffer_load_dword {v(reg)}, v6, s[16:19], 0 offen sc1")
def cnt_cond(A, reg):
    A(f"v_readfirstlane_b32 s34, {v(reg)}\ns_nop 1\ns_cmp_ge_u32 s34, 256")

def check(slow, name, cond, issue):
    def inline(B):
        cond(B); B(f"s_cbranch_scc0 {name}_slow"); B.label(name + "_ok")
    def outl(B):
        B.label(name + "_slow")
        B("s_mov_b32 s71, 0"); B.label(name + "_spin")
        issue(B); B("s_waitcnt vmcnt(0)")
        cond(B)
        B(f"s_cbranch_scc1 {name}_ok\ns_add_u32 s71, s71, 1\ns_cmp_lt_u32 s71, 0x100000\ns_cbranch_scc1 {name}_spin\ns_branch {name}_ok")
    slow.append(outl)
    return inline

def wdf_base(A, dst, wsreg):
    A(f"""
    s_mul_i32 s34, {wsreg}, 14
    s_cmp_eq_u32 {wsreg}, 3
    s_cselect_b32 s35, 1, 0
    s_sub_u32 s34, s34, s35
    s_mul_i32 s35, {s(S_N)}, 54
    s_add_u32 s34, s34, s35
    s_mul_i32 {dst}, s34, 5120
    s_add_u32 {dst}, {dst}, {WDF}
    """)

def epi_loads(A):
    L = V_L
    A(f"""
    v_and_b32 v6, 31, {v(L)}
    s_lshl_b32 s34, {s(S_RB)}, 7
    s_lshl_b32 s35, {s(S_SH)}, 6
    s_add_u32 s34, s34, s35
    v_add_u32 v7, s34, v6
    v_lshlrev_b32 v7, 3, v7
    v_add_u32 v7, {STAT}, v7
    v_lshlrev_b32 v6, 4, v6
    v_lshrrev_b32 v10, 5, {v(L)}
    v_lshl_add_u32 v6, v10, 11, v6
    s_mul_i32 s34, {s(S_CIDX)}, 40
    s_lshr_b32 s35, {s(S_W)}, 1
    s_add_u32 s34, s34, s35
    s_lshl_b32 s34, s34, 9
    s_add_u32 s34, s34, {CSP}
    buffer_load_dwordx2 v[2:3], v7, s[12:15], 0 offen sc1
    buffer_load_dwordx2 v[4:5], v7, s[12:15], 0 offen offset:256 sc1
    """)
    for i in range(5):
        A(f"buffer_load_dwordx4 {v(V_ROW + 4 * i, 4)}, v6, s[12:15], s34 offen sc1")
        if i < 4: A("s_add_u32 s34, s34, 4096")

def setup_main(A):
    L = V_L
    A(f"""
    s_mov_b32 {s(S_TYPE)}, 0
    s_mov_b32 s33, 0
    s_cmp_ge_u32 {s(S_CIDX)}, 9
    s_cselect_b32 {s(S_TYPE)}, 1, {s(S_TYPE)}
    s_cselect_b32 s33, 9, s33
    s_cmp_ge_u32 {s(S_CIDX)}, 11
    s_cselect_b32 {s(S_TYPE)}, 2, {s(S_TYPE)}
    s_cselect_b32 s33, 11, s33
    s_sub_u32 {s(S_C)}, {s(S_CIDX)}, s33
    s_lshr_b32 s32, {s(S_W)}, 2
    s_and_b32 {s(S_SH)}, {s(S_W)}, 1
    s_mov_b32 s8, s36
    s_mov_b32 s9, s37
    s_mov_b32 s10, {X_BYTES}
    s_mov_b32 s11, 0x20000
    s_mul_i32 s70, {s(S_RB)}, {128 * 1280}
    s_mul_i32 s34, {s(S_P)}, 640
    s_add_u32 s70, s70, s34
    s_lshl_b32 {s(S_XDST)}, {s(S_W)}, 11
    s_add_u32 {s(S_XDST)}, {s(S_XDST)}, {XBASE}
    """)
    A(f"""
    v_lshrrev_b32 v2, 3, {v(L)}
    s_lshl_b32 s34, {s(S_W)}, 4
    v_add_u32 v2, s34, v2
    v_mul_u32_u24 v3, 1280, v2
    v_lshrrev_b32 v4, 4, {v(L)}
    v_xor_b32 v4, v4, {v(L)}
    v_and_b32 v4, 7, v4
    v_lshl_add_u32 {v(V_DX)}, v4, 4, v3
    v_xor_b32 v4, 4, v4
    v_lshl_add_u32 v4, v4, 4, v3
    v_add_u32 {v(V_DX + 1)}, {8 * 1280}, v4
    """)
    def xdma(g, half):
        A(f"s_add_u32 {s(S_T)}, {s(S_XDST)}, {g * XSLOT + half * 1024}\ns_mov_b32 m0, {s(S_T)}\ns_add_u32 {s(S_T)}, s70, {g * 128}")
        A(f"buffer_load_dwordx4 {v(V_DX + half)}, {s(8, 4)}, {s(S_T)} offen lds")
    xdma(0, 0); xdma(0, 1)
    A(f"""
    s_add_u32 {s(S_XD)}, s70, {2 * 128}
    s_cmp_eq_u32 {s(S_TYPE)}, 0
    s_cbranch_scc0 L_setup_qkv
    s_cmp_eq_u32 s32, 0
    s_cselect_b32 s4, s40, s42
    s_cselect_b32 s5, s41, s43
    s_mov_b32 s6, {WG_BYTES}
    s_mov_b32 s33, 3456
    s_mul_i32 {s(S_WSO)}, {s(S_C)}, 384
    s_mov_b32 s68, 24
    s_mov_b32 s69, 3
    s_branch L_setup_done
    L_setup_qkv:
    s_mov_b32 s4, s38
    s_mov_b32 s5, s39
    s_mov_b32 s6, {WQKV_BYTES}
    s_mov_b32 s33, 3840
    s_mov_b32 s68, 20
    s_mov_b32 s69, 2
    s_cmp_eq_u32 {s(S_TYPE)}, 1
    s_cbranch_scc0 L_setup_kv
    s_mul_i32 {s(S_WSO)}, {s(S_C)}, 640
    s_mul_i32 s34, s32, 320
    s_add_u32 {s(S_WSO)}, {s(S_WSO)}, s34
    s_branch L_setup_done
    L_setup_kv:
    s_mul_i32 {s(S_WSO)}, {s(S_C)}, 320
    s_mul_i32 s34, s32, 1280
    s_add_u32 {s(S_WSO)}, {s(S_WSO)}, s34
    s_add_u32 {s(S_WSO)}, {s(S_WSO)}, 1280
    L_setup_done:
    s_mov_b32 s7, 0x20000
    s_lshl_b32 {s(S_WSTEP)}, s33, 5
    s_and_b32 s34, {s(S_W)}, 3
    s_lshl_b32 s35, s34, 3
    s_mul_i32 s35, s35, s33
    s_add_u32 {s(S_WSO)}, {s(S_WSO)}, s35
    s_mul_i32 s35, {s(S_WSTEP)}, 10
    s_mul_i32 s35, s35, {s(S_P)}
    s_add_u32 {s(S_WSO)}, {s(S_WSO)}, s35
    s_mul_i32 {s(S_WDST)}, s32, {SEGB}
    s_mul_i32 s34, s34, 3072
    s_add_u32 {s(S_WDST)}, {s(S_WDST)}, s34
    s_mov_b32 s35, -24
    """)
    for j in range(3):
        A(f"""
        v_add_u32 v2, {64 * j}, {v(L)}
        v_mul_u32_u24 v3, 2731, v2
        v_lshrrev_b32 v3, 16, v3
        v_mad_i32_i24 v4, v3, s35, v2
        v_and_b32 v5, 3, v3
        v_lshlrev_b32 v5, 1, v5
        v_xor_b32 v4, v5, v4
        v_lshlrev_b32 v5, 4, v4
        v_mad_u32_u24 v5, v3, s33, v5
        v_subrev_u32 v5, {1024 * j}, v5
        v_cmp_gt_u32 vcc, s68, v4
        v_mov_b32 v6, 0x40000000
        s_nop 0
        v_cndmask_b32 {v(V_DW + j)}, v6, v5, vcc
        """)
    def wdma(slot):
        A(f"s_add_u32 {s(S_T)}, {s(S_WDST)}, {slot * WSLOT}\ns_mov_b32 m0, {s(S_T)}\ns_nop 0")
        for j in range(3):
            A(f"buffer_load_dwordx4 {v(V_DW + j)}, {s(4, 4)}, {s(S_WSO)} offen offset:{1024 * j} lds")
        A(f"s_add_u32 {s(S_WSO)}, {s(S_WSO)}, {s(S_WSTEP)}")
    wdma(0)
    A(f"""
    s_lshr_b32 s34, {s(S_W)}, 1
    s_and_b32 s34, s34, 1
    s_cmp_eq_u32 s32, 0
    s_cselect_b32 s35, 3, s69
    s_mov_b32 {s(S_B)}, s35
    s_mul_i32 s34, s34, s35
    s_cselect_b32 s35, 0, 6
    s_add_u32 {s(S_TB)}, s34, s35
    s_and_b32 {s(S_DUTY)}, {s(S_RB)}, 7
    s_cmp_eq_u32 {s(S_SH)}, s32
    s_cselect_b32 {s(S_DUTY)}, {s(S_DUTY)}, 30
    s_cmp_gt_u32 {s(S_DUTY)}, 4
    s_cselect_b32 {s(S_DUTY)}, 30, {s(S_DUTY)}
    s_mov_b32 {s(S_ONES)}, 0x3f803f80
    """)
    A(f"s_mov_b32 s71, s70")
    A(f"v_lshlrev_b32 v6, 2, {v(L)}\nv_add_u32 v6, {LFL}, v6\nv_mov_b32 v7, 0\nds_write_b32 v6, v7")
    zero_and_row(A, False)
    A(f"s_mov_b32 s70, s71")
    wdma(1); xdma(1, 0); xdma(1, 1); wdma(2); wdma(3); xdma(2, 0)
    Prof.stamp(A, 11)
    A(f"""
    v_lshrrev_b32 v2, 4, {v(L)}
    v_and_b32 v3, 1, v2
    v_lshrrev_b32 v2, 1, v2
    v_bfe_u32 v4, {v(L)}, 2, 2
    v_lshl_add_u32 v5, v2, 3, v4
    v_mul_u32_u24 v5, 384, v5
    v_mul_u32_u24 v3, {SEGB}, v3
    v_add_u32 v5, v5, v3
    v_and_b32 v6, 1, {v(L)}
    v_bfe_u32 v7, {v(L)}, 1, 1
    v_lshl_add_u32 v5, v7, 3, v5
    v_lshlrev_b32 v4, 1, v4
    """)
    for t in range(3):
        A(f"""
        s_add_u32 s34, {s(S_TB)}, {t}
        s_lshl_b32 s34, s34, 1
        v_add_u32 v8, s34, v6
        v_xor_b32 v8, v8, v4
        v_lshl_add_u32 {v(V_WR + t)}, v8, 4, v5
        """)
    A(f"""
    v_and_b32 v2, 31, {v(L)}
    s_lshl_b32 s34, {s(S_SH)}, 6
    v_add_u32 v3, s34, v2
    v_lshlrev_b32 v3, 7, v3
    v_add_u32 v3, {XBASE}, v3
    v_bfe_u32 v4, {v(L)}, 1, 3
    v_lshrrev_b32 v5, 5, {v(L)}
    """)
    for k in range(4):
        A(f"""
        v_add_u32 v6, {2 * k}, v5
        v_xor_b32 v6, v6, v4
        v_lshl_add_u32 {v(V_XR + k)}, v6, 4, v3
        """)
    for r in range(V_ACC, V_ACC + 96):
        A(f"v_mov_b32 {v(r)}, 0")
    for t in range(3):
        A(f"v_mov_b32 {v(V_CS + t)}, 0")
    for t in range(3):
        A(f"v_add_u32 {v(V_WR2 + t)}, {2 * WSLOT}, {v(V_WR + t)}")
    A(f"""
    v_lshlrev_b32 {v(V_L16)}, 4, {v(L)}
    s_mov_b32 {s(S_XSTEP)}, 128
    s_mul_i32 {s(S_XWRAP)}, {s(S_P)}, 1280
    s_mul_i32 {s(S_WWRAP)}, {s(S_WSTEP)}, 20
    s_mul_i32 {s(S_WWRAP)}, {s(S_WWRAP)}, {s(S_P)}
    s_and_b32 s33, {s(S_W)}, 3
    """)
    wdf_base(A, s(S_WSO2), "s33")
    A(f"""
    s_lshr_b32 s34, {s(S_W)}, 2
    s_mul_i32 s34, s34, 3072
    s_add_u32 {s(S_WSO2)}, {s(S_WSO2)}, s34
    s_lshr_b32 s33, {s(S_W)}, 1
    """)
    wdf_base(A, s(S_XD2), "s33")
    A(f"""
    s_and_b32 s34, {s(S_W)}, 1
    s_lshl_b32 s34, s34, 11
    s_add_u32 {s(S_XD2)}, {s(S_XD2)}, s34
    s_add_u32 {s(S_XD2)}, {s(S_XD2)}, {24 * 1024}
    s_cmp_eq_u32 {s(S_TYPE)}, 2
    s_cselect_b32 {s(S_WSO2)}, 0x7f000000, {s(S_WSO2)}
    s_cselect_b32 {s(S_XD2)}, 0x7f000000, {s(S_XD2)}
    s_waitcnt vmcnt(12) lgkmcnt(0)
    s_barrier
    """)
    count_in(A)
    Prof.stamp(A, 2); Prof.stamp(A, 8, real=True)

def first_reads(A, b):
    for txt, regs in reads_for(b, 0, 0, 0):
        A(txt)

V_CSV = 16
V_TMP = 48
LOG2E = 0x3fb8aa3b
EPS6 = 0x358637bd

def epi_common(A, b, slow):
    L = V_L
    Prof.stamp(A, 3); Prof.stamp(A, 9, real=True)
    estamp(A, 24)
    A(f"s_waitcnt vmcnt({5 if PRELOAD else 4}) lgkmcnt(0)")
    estamp(A, 25)
    def cond(B):
        regs = [V_ROW + 4 * i + t for i in range(5) for t in range(b)] + [3, 5]
        B(f"v_min3_u32 v6, {v(regs[0])}, {v(regs[1])}, {v(regs[2])}")
        rest = regs[3:]
        while rest:
            if len(rest) >= 2:
                B(f"v_min3_u32 v6, v6, {v(rest[0])}, {v(rest[1])}"); rest = rest[2:]
            else:
                B(f"v_min_u32 v6, v6, {v(rest[0])}"); rest = rest[1:]
        B("v_cmp_eq_u32 vcc, 0, v6\ns_nop 4\ns_cmp_eq_u64 vcc, 0")
    check(slow, f"L_ev{b}", cond, epi_loads)(A)
    for i in range(1, 5):
        for t in range(b):
            A(f"v_add_f32 {v(V_ROW + t)}, {v(V_ROW + t)}, {v(V_ROW + 4 * i + t)}")
    for t in range(b):
        A(f"v_mov_b32 {v(V_ROW + 4 + t)}, {v(V_ROW + t)}")
    A(f"""
    v_and_b32 v8, 31, {v(L)}
    v_lshlrev_b32 v8, 2, v8
    s_mul_i32 s34, {s(S_W)}, 384
    s_add_u32 s34, s34, {CSB}
    v_add_u32 v8, s34, v8
    """)
    for t in range(b):
        A(f"v_permlane32_swap_b32 {v(V_ROW + t)}, {v(V_ROW + 4 + t)}")
    A("s_nop 0")
    for t in range(b):
        A(f"v_add_f32 {v(V_ROW + t)}, {v(V_ROW + t)}, {v(V_ROW + 4 + t)}")
    for t in range(b):
        A(f"ds_write_b32 v8, {v(V_ROW + t)} offset:{128 * t}")
    A(f"""
    v_lshrrev_b32 v10, 5, {v(L)}
    v_lshl_add_u32 v10, v10, 4, s34
    v_sub_f32 v2, 0, v2
    v_sub_f32 v4, 0, v4
    s_waitcnt lgkmcnt(0)
    """)
    Prof.stamp(A, 4)
    estamp(A, 26)

def load_cs(A, t):
    for j in range(4):
        A(f"ds_read_b128 {v(V_CSV + 4 * j, 4)}, v10 offset:{128 * t + 32 * j}")
    A("s_waitcnt lgkmcnt(0)")

def center(A, T, t):
    m = 2 + 2 * T
    for q in range(8):
        r = acc(T, t) + 2 * q
        A(f"v_pk_fma_f32 {v(r, 2)}, {v(V_CSV + 2 * q, 2)}, {v(m, 2)}, {v(r, 2)} op_sel_hi:[1,0,1]")

def epi_gu(A):
    L = V_L
    A("v_mul_f32 v6, v3, v3\nv_mul_f32 v8, v5, v5")
    A(f"""
    v_bfe_u32 v12, {v(L)}, 4, 1
    v_lshlrev_b32 v12, 10, v12
    v_lshrrev_b32 v13, 5, {v(L)}
    v_lshl_add_u32 v12, v13, 8, v12
    v_and_b32 v13, 15, {v(L)}
    v_lshl_add_u32 v12, v13, 4, v12
    s_lshl_b32 s55, {s(S_RB)}, 1
    s_add_u32 s55, s55, {s(S_SH)}
    s_mul_i32 s55, s55, 54
    s_mul_i32 s56, {s(S_C)}, 12
    s_add_u32 s56, s56, {s(S_TB)}
    """)
    for t in range(3):
        load_cs(A, t)
        A(f"""
        s_add_u32 s57, s56, {t}
        s_lshr_b32 s33, s57, 1
        s_add_u32 s33, s33, s55
        s_lshl_b32 s33, s33, 12
        s_and_b32 s57, s57, 1
        s_lshl_b32 s57, s57, 9
        s_add_u32 s33, s33, s57
        """)
        for T in range(2):
            center(A, T, t)
            r = acc(T, t)
            rs = 6 + 2 * T
            for q in range(4):
                A(f"v_pk_mul_f32 {v(r + 2 * q, 2)}, {v(r + 2 * q, 2)}, {v(r + 8 + 2 * q, 2)}")
            for q in range(4):
                A(f"v_pk_mul_f32 {v(r + 2 * q, 2)}, {v(r + 2 * q, 2)}, {v(rs, 2)} op_sel_hi:[1,0]")
            for q in range(4):
                A(f"v_cvt_pk_bf16_f32 {v(r + 8 + q)}, {v(r + 2 * q)}, {v(r + 2 * q + 1)}")
            A(f"buffer_store_dwordx4 {v(r + 8, 4)}, v12, s[12:15], s33 offen offset:{2048 * T}{ST}")
        estamp(A, 27 + t)

def phi8(A, r, T, n, tmp):
    rs = 3 + 2 * T
    rl = 6 + 2 * T
    for q in range(n // 2):
        A(f"v_pk_mul_f32 {v(tmp + 2 * q, 2)}, {v(r + 2 * q, 2)}, {v(rl, 2)} op_sel_hi:[1,0]")
    for q in range(n):
        A(f"v_max_f32 {v(r + q)}, 0, {v(r + q)}")
    for q in range(n):
        A(f"v_exp_f32 {v(tmp + q)}, {v(tmp + q)} clamp")
    for q in range(n):
        A(f"v_fma_f32 {v(r + q)}, {v(r + q)}, {v(rs)}, v14")
    for q in range(n // 2):
        A(f"v_pk_add_f32 {v(r + 2 * q, 2)}, {v(r + 2 * q, 2)}, {v(tmp + 2 * q, 2)}")

def epi_q(A, b):
    L = V_L
    A(f"v_mul_f32 v6, {hex(LOG2E)}, v3\nv_mul_f32 v8, {hex(LOG2E)}, v5\nv_mov_b32 v14, {hex(EPS6)}")
    A(f"""
    v_bfe_u32 v12, {v(L)}, 4, 1
    v_lshlrev_b32 v12, 10, v12
    v_and_b32 v13, 15, {v(L)}
    v_lshl_add_u32 v12, v13, 4, v12
    v_lshrrev_b32 v13, 5, {v(L)}
    s_lshl_b32 s55, {s(S_RB)}, 1
    s_add_u32 s55, s55, {s(S_SH)}
    s_mul_i32 s55, s55, 20
    s_mul_i32 s56, {s(S_C)}, 10
    s_add_u32 s55, s55, s56
    s_lshl_b32 s55, s55, 12
    s_add_u32 s55, s55, {PQF}
    s_add_u32 s56, s55, {5 * 4096}
    """)
    for t in range(b):
        load_cs(A, t)
        A(f"""
        s_add_u32 s57, {s(S_TB)}, {t}
        s_lshl_b32 s57, s57, 1
        v_add_u32 v15, s57, v13
        v_mul_u32_u24 v64, 52, v15
        v_lshrrev_b32 v64, 8, v64
        v_mul_u32_u24 v65, 5, v64
        v_sub_u32 v15, v15, v65
        v_lshlrev_b32 v15, 12, v15
        v_lshl_add_u32 v15, v64, 8, v15
        v_add_u32 v15, v15, v12
        """)
        for T in range(2):
            center(A, T, t)
            r = acc(T, t)
            phi8(A, r, T, 16, V_TMP)
            for q in range(8):
                A(f"v_cvt_pk_bf16_f32 {v(V_TMP + q)}, {v(r + 2 * q)}, {v(r + 2 * q + 1)}")
            A(f"buffer_store_dwordx4 {v(V_TMP, 4)}, v15, s[12:15], s55 offen offset:{2048 * T}{ST}")
            A(f"buffer_store_dwordx4 {v(V_TMP + 4, 4)}, v15, s[12:15], s56 offen offset:{2048 * T}{ST}")
            A("s_nop 1")
        estamp(A, 27 + t)

def epi_kv(A, b):
    L = V_L
    A(f"v_mul_f32 v6, {hex(LOG2E)}, v3\nv_mul_f32 v8, {hex(LOG2E)}, v5\nv_mov_b32 v14, {hex(EPS6)}")
    A(f"""
    v_and_b32 v12, 31, {v(L)}
    s_lshl_b32 s55, {s(S_SH)}, 6
    v_add_u32 v12, s55, v12
    v_mul_u32_u24 v12, 320, v12
    v_lshrrev_b32 v13, 5, {v(L)}
    v_lshl_add_u32 v12, v13, 4, v12
    s_lshl_b32 s55, {s(S_TB)}, 5
    v_add_u32 v12, s55, v12
    """)
    for t in range(b):
        load_cs(A, t)
        for T in range(2):
            center(A, T, t)
            r = acc(T, t)
            phi8(A, r, T, 8, V_TMP)
            rsp = 2 + 2 * T
            for q in range(4):
                A(f"v_pk_mul_f32 {v(r + 8 + 2 * q, 2)}, {v(r + 8 + 2 * q, 2)}, {v(rsp, 2)} op_sel:[0,1] op_sel_hi:[1,1]")
            for q in range(8):
                A(f"v_cvt_pk_bf16_f32 {v(V_TMP + q)}, {v(r + 2 * q)}, {v(r + 2 * q + 1)}")
            A(f"ds_write_b128 v12, {v(V_TMP, 4)} offset:{T * 32 * 320 + 32 * t}")
            A(f"ds_write_b128 v12, {v(V_TMP + 4, 4)} offset:{40960 + T * 32 * 320 + 32 * t}")
        estamp(A, 27 + t)

def epi_kv_tail(A):
    L = V_L
    A("s_waitcnt lgkmcnt(0)")
    estamp(A, 30)
    A("s_barrier")
    estamp(A, 31)
    A(f"""
    v_lshrrev_b32 v2, 5, {v(L)}
    v_bfe_u32 v3, {v(L)}, 2, 2
    v_lshl_add_u32 v2, v2, 3, v3
    v_mul_u32_u24 v2, 320, v2
    v_bfe_u32 v3, {v(L)}, 4, 1
    v_lshl_add_u32 v2, v3, 5, v2
    v_and_b32 v3, 3, {v(L)}
    v_lshl_add_u32 v2, v3, 3, v2
    s_mul_i32 s55, {s(S_W)}, 40
    v_add_u32 v2, s55, v2
    v_mov_b32 v4, {s(S_ONES)}
    v_mov_b32 v5, {s(S_ONES)}
    v_mov_b32 v6, {s(S_ONES)}
    v_mov_b32 v7, {s(S_ONES)}
    v_add_u32 v8, 40960, v2
    """)
    D1, D2 = 160, 176
    for r in range(32):
        A(f"v_mov_b32 {v(D1 + r)}, 0")
    for st in range(8):
        base = 32 + 8 * st
        for p in range(2):
            A(f"ds_read_b64_tr_b16 {v(base + 2 * p, 2)}, v2 offset:{(16 * st + 4 * p) * 320}")
        for p in range(2):
            A(f"ds_read_b64_tr_b16 {v(base + 4 + 2 * p, 2)}, v8 offset:{(16 * st + 4 * p) * 320}")
    for st in range(8):
        base = 32 + 8 * st
        A(f"s_waitcnt lgkmcnt({min(15, 4 * (7 - st))})")
        A(f"v_mfma_f32_32x32x16_bf16 {v(D1, 16)}, {v(base, 4)}, {v(base + 4, 4)}, {v(D1, 16)}")
        A(f"v_mfma_f32_32x32x16_bf16 {v(D2, 16)}, {v(base, 4)}, {v(4, 4)}, {v(D2, 16)}")
    estamp(A, 32)
    A(f"""
    v_and_b32 v8, 31, {v(L)}
    v_lshrrev_b32 v9, 5, {v(L)}
    v_mul_u32_u24 v10, 80, v8
    s_lshl_b32 s55, {s(S_C)}, 3
    s_add_u32 s55, s55, {s(S_W)}
    s_lshl_b32 s55, s55, 4
    s_add_u32 s55, s55, {s(S_RB)}
    s_mul_i32 s55, s55, {KVP_BLK}
    s_add_u32 s55, s55, {KVP}
    v_cmp_eq_u32 vcc, 20, v8
    v_lshl_add_u32 v10, v9, 4, v10
    s_nop 7
    """)
    for r in range(12):
        A(f"v_cndmask_b32 {v(D1 + r)}, {v(D1 + r)}, {v(D2 + r)}, vcc")
    for r in (0, 4, 8):
        A(f"v_or_b32 {v(D1 + r)}, 1, {v(D1 + r)}")
    A(f"""
    v_cmp_ge_u32 vcc, 20, v8
    s_and_saveexec_b64 s[56:57], vcc
    buffer_store_dwordx4 {v(D1, 4)}, v10, s[12:15], s55 offen{ST}
    buffer_store_dwordx4 {v(D1 + 4, 4)}, v10, s[12:15], s55 offen offset:32{ST}
    v_cmp_eq_u32 vcc, 0, v9
    s_and_b64 exec, exec, vcc
    buffer_store_dwordx4 {v(D1 + 8, 4)}, v10, s[12:15], s55 offen offset:64{ST}
    s_mov_b64 exec, s[56:57]
    s_barrier
    """)

def post_f1(A):
    lab = A.uid("L_f1")
    estamp(A, 33)
    A("s_waitcnt vmcnt(0) lgkmcnt(0)")
    estamp(A, 34)
    A("s_barrier")
    estamp(A, 35)
    A(f"""
    s_cmp_lg_u32 {s(S_W)}, 0
    s_cbranch_scc1 {lab}
    s_lshl_b32 s34, {s(S_RB)}, 4
    s_add_u32 s34, s34, {s(S_CIDX)}
    s_lshl_b32 s34, s34, 7
    s_add_u32 s34, s34, {F1}
    v_mov_b32 v6, 0
    v_mov_b32 v7, 1
    s_mov_b64 exec, 1
    buffer_store_dword v7, v6, s[12:15], s34 offen sc1
    s_mov_b64 exec, -1
    {lab}:
    """)

def kappa_of(A, dst, n):
    A(f"""
    s_mov_b32 {dst}, {n}
    s_cmp_ge_u32 {n}, 7
    s_cselect_b32 s35, 7, 0
    s_add_u32 {dst}, {dst}, s35
    s_cmp_ge_u32 {n}, 14
    s_cselect_b32 s35, 7, 0
    s_add_u32 {dst}, {dst}, s35
    s_cmp_ge_u32 {n}, 21
    s_cselect_b32 s35, 6, 0
    s_add_u32 {dst}, {dst}, s35
    s_sub_u32 s35, {n}, 21
    s_cmp_ge_u32 {n}, 28
    s_cselect_b32 {dst}, s35, {dst}
    s_cmp_ge_u32 {n}, 35
    s_cselect_b32 s35, 7, 0
    s_add_u32 {dst}, {dst}, s35
    s_cmp_ge_u32 {n}, 42
    s_cselect_b32 s35, 7, 0
    s_add_u32 {dst}, {dst}, s35
    s_cmp_ge_u32 {n}, 48
    s_cselect_b32 s35, 7, 0
    s_add_u32 {dst}, {dst}, s35
    """)

def side(A):
    L = V_L
    K = [24, 25, 26, 27]
    A(f"""
    s_mov_b32 s8, s36
    s_mov_b32 s9, s37
    s_mov_b32 s10, {X_BYTES}
    s_mov_b32 s11, 0x20000
    s_mov_b32 s4, s62
    s_mov_b32 s5, s63
    s_mov_b32 s6, {WD_BYTES}
    s_mov_b32 s7, 0x20000
    s_mov_b32 {s(S_ONES)}, 0x3f803f80
    s_mov_b32 {s(S_TYPE)}, 3
    """)
    for i in range(4):
        A(f"s_add_u32 s33, {s(S_RB)}, {16 * i}")
        kappa_of(A, s(K[i]), "s33")
        if i == 3: A(f"s_cmp_ge_u32 s33, 54\ns_cselect_b32 {s(K[i])}, 63, {s(K[i])}")
    zero_and_row(A, True)
    A(f"""
    s_cmp_lg_u32 {s(S_W)}, 1
    s_cbranch_scc1 L_side_nzz
    v_mul_u32_u24 v6, 13108, {v(L)}
    v_lshrrev_b32 v6, 16, v6
    v_mul_u32_u24 v7, 5, v6
    v_sub_u32 v7, {v(L)}, v7
    v_mul_u32_u24 v6, 1280, v6
    v_lshl_add_u32 v6, v7, 4, v6
    s_mul_i32 s33, {s(S_RB)}, 80
    s_add_u32 s33, s33, {ZB}
    s_mov_b32 s34, -1
    s_mov_b32 s35, 0xff
    s_mov_b64 exec, s[34:35]
    buffer_store_dwordx4 v[8:11], v6, s[12:15], s33 offen sc1
    s_mov_b64 exec, -1
    L_side_nzz:
    """)
    A(f"v_mov_b32 v6, {s(K[0])}")
    for i in range(1, 4): A(f"v_writelane_b32 v6, {s(K[i])}, {i}")
    A(f"""
    v_lshlrev_b32 v6, 7, v6
    v_add_u32 v30, {FW}, v6
    v_mov_b32 v8, 0
    s_cmp_lg_u32 {s(S_W)}, 0
    s_cbranch_scc1 L_side_nz
    s_mov_b64 exec, 15
    buffer_store_dword v8, v30, s[12:15], 0 offen sc1
    s_mov_b64 exec, -1
    L_side_nz:
    """)
    for i in range(5):
        A(f"""
        s_mul_i32 s32, {s(S_W)}, 320
        s_add_u32 s32, s32, {64 * i}
        v_add_u32 v2, s32, {v(L)}
        v_mul_u32_u24 v3, 3277, v2
        v_lshrrev_b32 v3, 18, v3
        v_mul_u32_u24 v4, 80, v3
        v_sub_u32 v4, v2, v4
        v_and_b32 v5, 3, v3
        v_lshlrev_b32 v5, 1, v5
        v_xor_b32 v4, v5, v4
        v_mul_u32_u24 v3, 1280, v3
        v_lshl_add_u32 {v(20 + i)}, v4, 4, v3
        """)
    def dma(i):
        A(f"""
        s_mul_i32 s35, {s(K[i])}, {32 * 1280}
        s_cmp_ge_u32 {s(K[i])}, 54
        s_cselect_b32 s35, 0x7f000000, s35
        s_mul_i32 s33, {s(S_W)}, 5120
        s_add_u32 s33, s33, {40960 * i}
        """)
        for q in range(5):
            A(f"s_mov_b32 m0, s33\ns_add_u32 s33, s33, 1024\nbuffer_load_dwordx4 {v(20 + q)}, s[4:7], s35 offen lds")
    dma(0); dma(1)
    A(f"""
    v_lshrrev_b32 v2, 4, {v(L)}
    v_bfe_u32 v3, {v(L)}, 2, 2
    v_lshl_add_u32 v4, v2, 3, v3
    v_mul_u32_u24 v4, 1280, v4
    v_and_b32 v5, 1, {v(L)}
    v_lshl_add_u32 v4, v5, 3, v4
    v_bfe_u32 v5, {v(L)}, 1, 1
    v_lshlrev_b32 v3, 1, v3
    """)
    for n in range(5):
        A(f"""
        s_mul_i32 s32, {s(S_W)}, 10
        s_add_u32 s32, s32, {2 * n}
        v_add_u32 v6, s32, v5
        v_xor_b32 v6, v6, v3
        v_lshl_add_u32 {v(12 + n)}, v6, 4, v4
        """)
    A(f"v_lshlrev_b32 v31, 4, {v(L)}")
    A("s_waitcnt vmcnt(10)\ns_barrier")
    count_in(A)
    row_stats(A)
    def job(i):
        for n in range(5):
            for p in range(2):
                off = 40960 * i + 4 * p * 1280
                if off > 65535 - 0:
                    A(f"ds_read_b64_tr_b16 {v(48 + 4 * n + 2 * p, 2)}, {v(92 + n)} offset:{off - 81920}")
                else:
                    A(f"ds_read_b64_tr_b16 {v(48 + 4 * n + 2 * p, 2)}, {v(12 + n)} offset:{off}")
        A(f"""
        s_mul_i32 s34, {s(S_W)}, 54
        s_add_u32 s34, s34, {s(K[i])}
        s_mul_i32 s34, s34, 5120
        s_add_u32 s34, s34, {WDF}
        s_cmp_ge_u32 {s(K[i])}, 54
        s_cselect_b32 s34, 0x7f000000, s34
        s_waitcnt lgkmcnt(0)
        """)
        for n in range(5):
            A(f"buffer_store_dwordx4 {v(48 + 4 * n, 4)}, v31, s[12:15], s34 offen{ST}")
            if n < 4: A("s_add_u32 s34, s34, 1024")
        A("s_nop 1")
    for n in range(5): A(f"v_add_u32 {v(92 + n)}, 81920, {v(12 + n)}")
    def flags(lo):
        lab = A.uid("L_sf")
        A(f"""
        s_cmp_lg_u32 {s(S_W)}, 0
        s_cbranch_scc1 {lab}
        v_mov_b32 v7, 1
        s_mov_b64 exec, {3 << lo}
        buffer_store_dword v7, v30, s[12:15], 0 offen sc1
        s_mov_b64 exec, -1
        {lab}:
        """)
    A("s_waitcnt vmcnt(6)\ns_barrier")
    job(0)
    A("s_waitcnt vmcnt(5)\ns_barrier")
    job(1)
    dma(2); dma(3)
    A("s_waitcnt vmcnt(10)\ns_barrier")
    flags(0)
    A("s_waitcnt vmcnt(5)\ns_barrier")
    job(2)
    A("s_waitcnt vmcnt(5)\ns_barrier")
    job(3)
    A("s_waitcnt vmcnt(0)\ns_barrier")
    flags(2)

def gen_p1(A, KN, tail):
    A(f".globl {KN}\n.p2align 8\n.type {KN},@function\n{KN}:")
    A(f"s_cmp_ge_u32 s2, 256\ns_cbranch_scc1 L_end_{KN}")
    Prof.stamp(A, 0, real=True); Prof.stamp(A, 1)
    A(f"""
    s_load_dwordx4 s[36:39], s[0:1], 0
    s_load_dwordx4 s[40:43], s[0:1], 32
    s_load_dwordx4 s[44:47], s[0:1], 64
    s_load_dwordx2 s[60:61], s[0:1], 16
    s_load_dwordx2 s[62:63], s[0:1], 48
    s_load_dwordx2 s[64:65], s[0:1], 56
    v_and_b32 {v(V_L)}, 63, v0
    v_lshrrev_b32 v2, 6, v0
    s_nop 0
    v_readfirstlane_b32 {s(S_W)}, v2
    """)
    if CODEPF: code_prefetch(A, KN)
    decode(A)
    A(f"""
    s_waitcnt lgkmcnt(0)
    s_mov_b32 s12, s46
    s_mov_b32 s13, s47
    s_mov_b32 s14, {WS_USED}
    s_mov_b32 s15, 0x20000
    s_mov_b32 s16, s44
    s_mov_b32 s17, s45
    s_mov_b32 s18, 256
    s_mov_b32 s19, 0x20000
    """)
    Prof.stamp(A, 10)
    A(f"""
    s_cmp_eq_u32 {s(S_CIDX)}, 15
    s_cbranch_scc1 L_side
    """)
    setup_main(A)
    A(f"s_cmp_eq_u32 {s(S_B)}, 2\ns_cbranch_scc1 L_b2")
    slow = []
    first_reads(A, 3)
    main_loop(A, 3, slow)
    epi_common(A, 3, slow)
    A(f"s_cmp_eq_u32 {s(S_TYPE)}, 1\ns_cbranch_scc1 L_q3\ns_cmp_eq_u32 {s(S_TYPE)}, 2\ns_cbranch_scc1 L_kv3")
    epi_gu(A)
    A("s_branch L_p1_done")
    A.label("L_q3"); epi_q(A, 3); A("s_branch L_p1_done")
    A.label("L_kv3"); epi_kv(A, 3); A("s_branch L_kvtail")
    A.label("L_b2")
    first_reads(A, 2)
    main_loop(A, 2, slow)
    epi_common(A, 2, slow)
    A(f"s_cmp_eq_u32 {s(S_TYPE)}, 2\ns_cbranch_scc1 L_kv2")
    epi_q(A, 2); A("s_branch L_p1_done")
    A.label("L_kv2"); epi_kv(A, 2)
    A.label("L_kvtail"); Prof.stamp(A, 5); epi_kv_tail(A)
    A("s_branch L_p1_posted")
    A.label("L_p1_done")
    post_f1(A)
    A.label("L_p1_posted")
    tail(A, "main")
    for fn in slow: fn(A)
    A.label("L_side"); side(A)
    tail(A, "side")
    A.label(f"L_end_{KN}")
    A("s_endpgm")
```

```python
from asmlib import Asm, v, a, s, Prof
from common2 import *
import p1
from p1 import S_W, S_RB, S_CIDX, S_TYPE, S_R, S_N, V_L, XBASE, XSLOT, WSLOT, SEGB, LFL, FW_ALL

EXA = 148480
IMG = EXA + 4 * 1792
ZL = IMG + 4 * 1600
WOSZ = 40 * 320
F_MSEEN = 0; F_FREE = 1; F_READY = 5; F_EX = 12

S_H = 24; S_A = 25; S_A4 = 26; S_BIG = 27; S_U = 28; S_HD = 29; S_A0 = 30; S_H0 = 31
V_A = 2; V_B = 3; V_LB = 7; V_FL = 10; V_T = 11
ACC = 12; WA = 92; HB = 192
def acc(t, nt): return ACC + (t * 5 + nt) * 4
def wa(slot, nt): return WA + slot * 20 + nt * 4
def hb(ring, t): return HB + ring * 16 + t * 4
SLOT = [0, 1, 0, 1, 0, 1, 0, 2, 3, 4, 1, 0, 2, 3, 4, 1, 0, 2, 3]
BOUND = 0x200000

SETPRIO = True
PROF2 = False
def stamp2(A, k):
    if not PROF2: return
    A(f"s_memrealtime s[70:71]\ns_waitcnt lgkmcnt(0)\nv_writelane_b32 v0, s70, {k}")
def flush2(A):
    if not PROF2: return
    A(f"""
    s_lshl_b32 s70, s2, 3
    s_add_u32 s70, s70, {s(S_W)}
    s_lshl_b32 s70, s70, 8
    s_add_u32 s70, s70, 0x1600000
    s_mov_b32 s14, 0x2000000
    v_lshlrev_b32 v11, 2, {v(V_L)}
    buffer_store_dword v0, v11, s[12:15], s70 offen
    """)

def foff(f):
    if f < 18: return 0, (f // 6) * WSLOT + ((f % 6) // 3) * SEGB + (f % 3) * 1024
    if f < 24: return 1, ((f % 6) // 3) * SEGB + (f % 3) * 1024
    g = 10 + (f - 24) // 4
    return 2, (g % 3) * XSLOT + ((f - 24) % 4) * 1024

class Q:
    def __init__(self, A, cnt): self.A = A; self.cnt = cnt; self.q = []
    def issue(self, text, tag):
        self.A(text); self.q.append(tag)
    def need(self, *tags):
        last = -1
        for i, t in enumerate(self.q):
            if t in tags: last = i
        if last >= 0:
            n = len(self.q) - 1 - last
            assert n <= (63 if self.cnt == "vmcnt" else 15), (self.cnt, n)
            self.A(f"s_waitcnt {self.cnt}({n})")
            self.q = self.q[last + 1:]
    def clear(self): self.q = []

def poll(A, name, addr, nlanes, srd="s[12:15]"):
    mask = (1 << nlanes) - 1
    A(f"""
    s_mov_b32 s34, {hex(mask & 0xffffffff)}
    s_mov_b32 s35, {hex(mask >> 32)}
    s_mov_b64 exec, s[34:35]
    s_mov_b32 s71, 0
    {name}_spin:
    buffer_load_dword {v(V_T)}, {addr}, {srd}, 0 offen sc1
    s_waitcnt vmcnt(0)
    v_cmp_ne_u32 vcc, 0, {v(V_T)}
    s_add_u32 s71, s71, 1
    s_nop 3
    s_cmp_eq_u64 vcc, s[34:35]
    s_cbranch_scc1 {name}_ok
    s_cmp_lt_u32 s71, {BOUND}
    s_cbranch_scc1 {name}_spin
    {name}_ok:
    s_mov_b64 exec, -1
    """)

def lds_wait(A, name, addr, word):
    A(f"""
    s_mov_b32 s71, 0
    {name}_spin:
    ds_read_b32 {v(V_T)}, {addr} offset:{4 * word}
    s_add_u32 s71, s71, 1
    s_waitcnt lgkmcnt(0)
    v_readfirstlane_b32 s34, {v(V_T)}
    s_nop 1
    s_cmp_lg_u32 s34, 0
    s_cbranch_scc1 {name}_ok
    s_cmp_lt_u32 s71, {BOUND}
    s_cbranch_scc1 {name}_spin
    {name}_ok:
    """)

def lds_set_text(addr, word):
    return f"v_mov_b32 {v(V_T)}, 1\nds_write_b32 {addr}, {v(V_T)} offset:{4 * word}"

def kstart(A, dst, w):
    A(f"""
    s_mul_i32 {dst}, {w}, 14
    s_cmp_eq_u32 {w}, 3
    s_cselect_b32 s35, 1, 0
    s_sub_u32 {dst}, {dst}, s35
    """)

def common(A):
    L = V_L
    A(f"""
    s_and_b32 {s(S_U)}, {s(S_W)}, 3
    s_mov_b32 {s(S_BIG)}, 0x7f000000
    v_lshlrev_b32 {v(V_A)}, 4, {v(L)}
    s_mul_i32 s34, {s(S_U)}, 3072
    v_add_u32 {v(V_LB)}, s34, {v(V_A)}
    v_add_u32 {v(V_LB + 1)}, {3 * WSLOT}, {v(V_LB)}
    s_lshl_b32 s34, {s(S_U)}, 12
    s_add_u32 s34, s34, {XBASE}
    v_add_u32 {v(V_LB + 2)}, s34, {v(V_A)}
    s_lshl_b32 s34, {s(S_U)}, 2
    s_add_u32 s34, s34, {LFL}
    v_mov_b32 {v(V_FL)}, s34
    """)
    for t in range(4):
        A(f"""
        s_add_u32 s34, {s(S_U)}, {t}
        s_and_b32 s34, s34, 3
        s_lshl_b32 s34, s34, 10
        v_add_u32 {v(V_B + t)}, s34, {v(V_A)}
        """)

def a_loads(slot, base, base4):
    L = []
    for nt in range(5):
        if nt < 4: L.append(f"buffer_load_dwordx4 {v(wa(slot, nt), 4)}, {v(V_A)}, s[12:15], {base} offen offset:{1024 * nt}")
        else: L.append(f"buffer_load_dwordx4 {v(wa(slot, nt), 4)}, {v(V_A)}, s[12:15], {base4} offen")
    return L

def a_next(A):
    A(f"s_add_u32 {s(S_A)}, {s(S_A)}, 5120\ns_add_u32 {s(S_A4)}, {s(S_A4)}, 5120")

def lds_frag(dst, f):
    b, off = foff(f)
    return f"ds_read_b128 {v(dst, 4)}, {v(V_LB + b)} offset:{off}"

def own_preload(A):
    A(f"""
    s_mul_i32 s32, {s(S_U)}, 3072
    s_mov_b32 s33, {s(S_A0)}
    """)
    for g in range(8):
        A(f"s_add_u32 m0, s32, {(g // 2) * WSLOT + (g % 2) * SEGB}\ns_nop 0")
        for q in range(3):
            A(f"buffer_load_dwordx4 {v(V_A)}, s[12:15], s33 offen offset:{1024 * q} lds")
        A("s_add_u32 s33, s33, 3072")
    A(f"s_lshl_b32 s32, {s(S_U)}, 12\ns_add_u32 s32, s32, {XBASE}")
    for g in (10, 11, 12):
        A(f"s_add_u32 m0, s32, {(g % 3) * XSLOT}\ns_nop 0")
        for q in range(4 if g < 12 else 3):
            A(f"buffer_load_dwordx4 {v(V_A)}, s[12:15], s33 offen offset:{1024 * q} lds")
        A("s_add_u32 s33, s33, 4096")

def compute(A):
    L = V_L
    vq = Q(A, "vmcnt"); lq = Q(A, "lgkmcnt")
    kstart(A, "s33", s(S_U))
    A(f"""
    s_mul_i32 s34, {s(S_N)}, 54
    s_add_u32 s34, s34, s33
    s_mul_i32 {s(S_A0)}, s34, 5120
    s_add_u32 {s(S_A0)}, {s(S_A0)}, {WDF}
    s_mul_i32 s34, {s(S_R)}, 54
    s_add_u32 s34, s34, s33
    s_lshl_b32 {s(S_H)}, s34, 12
    s_add_u32 {s(S_H)}, {s(S_H)}, {HF}
    s_cmp_lt_u32 {s(S_TYPE)}, 2
    s_cbranch_scc1 L_p2_loaded
    s_cmp_lg_u32 {s(S_TYPE)}, 3
    s_cbranch_scc1 L_p2_fwok
    v_lshlrev_b32 v11, 7, {v(L)}
    v_add_u32 v255, {FW}, v11
    """)
    poll(A, "L_p2_fw", "v255", 54)
    A.label("L_p2_fwok")
    own_preload(A)
    A.label("L_p2_loaded")
    A(f"""
    s_add_u32 {s(S_A)}, {s(S_A0)}, {7 * 5120}
    s_add_u32 {s(S_A4)}, {s(S_A)}, 4096
    """)
    for st in (7, 8, 9):
        for x in a_loads(SLOT[st], s(S_A), s(S_A4)): A(x)
        a_next(A)
    A(f"""
    s_lshr_b32 s34, {s(S_R)}, 1
    s_lshl_b32 s34, s34, 4
    s_lshl_b32 s35, {s(S_U)}, 1
    s_add_u32 s34, s34, s35
    v_add_u32 {v(255)}, s34, {v(L)}
    v_lshlrev_b32 {v(255)}, 7, {v(255)}
    v_add_u32 {v(255)}, {F1}, {v(255)}
    """)
    stamp2(A, 1)
    poll(A, "L_p2_h", v(255), 3)
    stamp2(A, 2)
    def b_load(st, t):
        return f"buffer_load_dwordx4 {v(hb(st % 4, t), 4)}, {v(V_B + t)}, s[12:15], {s(S_H)} offen"
    def h_next(st):
        if st == 12:
            A(f"s_add_u32 {s(S_H)}, {s(S_H)}, 4096\ns_cmp_ge_u32 {s(S_U)}, 2\ns_cselect_b32 {s(S_H)}, {s(S_BIG)}, {s(S_H)}")
        else:
            A(f"s_add_u32 {s(S_H)}, {s(S_H)}, 4096")
    for st in range(4):
        for t in range(4): vq.issue(b_load(st, t), ("B", st, t))
        h_next(st)
    for st in range(2):
        for nt in range(5): lq.issue(lds_frag(wa(SLOT[st], nt), 5 * st + nt), ("A", st))
    for st in range(14):
        sl = SLOT[st]
        if st == 13:
            A(f"s_cmp_ge_u32 {s(S_U)}, 2\ns_cbranch_scc1 L_p2_skip13")
        if st < 7: lq.need(("A", st))
        elif st >= 10: vq.need(("A", st))
        if st == 3:
            lq.issue(lds_set_text(v(V_FL), F_FREE), "flag")
        for t in range(4):
            vq.need(("B", st, t))
            for nt in range(5):
                c = "0" if st == 0 else v(acc(t, nt), 4)
                A(f"v_mfma_f32_16x16x32_bf16 {v(acc(t, nt), 4)}, {v(wa(sl, nt), 4)}, {v(hb(st % 4, t), 4)}, {c}")
                if t == 3:
                    if st + 2 < 7:
                        lq.issue(lds_frag(wa(sl, nt), 5 * (st + 2) + nt), ("A", st + 2))
                    elif 5 <= st <= 8:
                        if st == 8 and nt == 0:
                            A(f"s_cmp_ge_u32 {s(S_U)}, 2\ns_cselect_b32 {s(S_A)}, {s(S_BIG)}, {s(S_A)}\ns_cselect_b32 {s(S_A4)}, {s(S_BIG)}, {s(S_A4)}")
                        vq.issue(a_loads(sl, s(S_A), s(S_A4))[nt], ("A", st + 5))
            if st + 4 < 14:
                vq.issue(b_load(st + 4, t), ("B", st + 4, t))
        if st + 4 < 14: h_next(st + 4)
        if 5 <= st <= 8: a_next(A)
        if st == 10:
            A(f"""
            s_lshl_b32 s34, {s(S_U)}, 4
            s_lshr_b32 s35, {s(S_N)}, 1
            s_add_u32 s34, s34, s35
            v_and_b32 v4, 3, {v(L)}
            v_lshl_add_u32 v4, v4, 2, s34
            v_lshlrev_b32 v4, 7, v4
            v_add_u32 v4, {F2}, v4
            """)
        if st == 11:
            vq.issue("buffer_load_dword v5, v4, s[12:15], 0 offen sc1", "MF")
        if st in (0, 6, 9): stamp2(A, {0: 3, 6: 4, 9: 5}[st])
    A.label("L_p2_skip13")
    stamp2(A, 6)
    A(f"""
    s_mul_i32 s34, {s(S_N)}, 20
    s_mul_i32 s35, {s(S_U)}, 5
    s_add_u32 s34, s34, s35
    s_mul_i32 {s(S_A)}, s34, 5120
    s_add_u32 {s(S_A)}, {s(S_A)}, {MF}
    s_add_u32 {s(S_A4)}, {s(S_A)}, 4096
    """)
    vq.clear(); lq.clear()
    A(f"""
    s_waitcnt vmcnt(0)
    s_mov_b32 s71, 0
    L_p2_ms_spin:
    v_cmp_ne_u32 vcc, 0, v5
    s_add_u32 s71, s71, 1
    s_nop 3
    s_cmp_eq_u64 vcc, -1
    s_cbranch_scc1 L_p2_ms_ok
    buffer_load_dword v5, v4, s[12:15], 0 offen sc1
    s_waitcnt vmcnt(0)
    s_cmp_lt_u32 s71, {BOUND}
    s_cbranch_scc1 L_p2_ms_spin
    L_p2_ms_ok:
    """)
    stamp2(A, 7)
    for st in range(14, 19):
        for x in a_loads(SLOT[st], s(S_A), s(S_A4)): vq.issue(x, ("A", st))
        a_next(A)
    lds_wait(A, "L_p2_rd", v(V_FL), F_READY)
    stamp2(A, 8)
    for k in range(4):
        for t in range(4): lq.issue(lds_frag(hb(k, t), 4 * k + t), ("B", 14 + k, t))
    A(f"""
    v_and_b32 v4, 15, {v(L)}
    s_lshl_b32 s34, {s(S_R)}, 6
    s_lshl_b32 s35, {s(S_U)}, 4
    s_add_u32 s34, s34, s35
    v_add_u32 v4, s34, v4
    v_mul_u32_u24 v4, 1280, v4
    v_lshrrev_b32 v5, 4, {v(L)}
    v_lshl_add_u32 v4, v5, 3, v4
    s_mul_i32 s34, {s(S_N)}, 160
    v_add_u32 v3, s34, v4
    s_mov_b32 s8, s36
    s_mov_b32 s9, s37
    s_mov_b32 s10, {X_BYTES}
    s_mov_b32 s11, 0x20000
    s_mov_b32 s4, s64
    s_mov_b32 s5, s65
    s_mov_b32 s6, {X_BYTES}
    s_mov_b32 s7, 0x20000
    """)
    V_X = wa(SLOT[14], 0)
    V_O = 3
    for st in range(14, 19):
        k = st - 14
        sl = SLOT[st]
        vq.need(("A", st))
        for t in range(4):
            lq.need(("B", st, t))
            for nt in range(5):
                A(f"v_mfma_f32_16x16x32_bf16 {v(acc(t, nt), 4)}, {v(wa(sl, nt), 4)}, {v(hb(k % 4, t), 4)}, {v(acc(t, nt), 4)}")
            if k == 0:
                lq.issue(lds_frag(hb(0, t), 16 + t), ("B", 18, t))
        if k == 0:
            for nt in range(5):
                vq.issue(f"buffer_load_dwordx2 {v(V_X + 2 * nt, 2)}, {v(V_O)}, s[8:11], 0 offen offset:{32 * nt}", "X")
    stamp2(A, 9)
    A("s_nop 7")
    for t in range(1, 4):
        for nt in range(5):
            b, off = foff(5 * (t - 1) + nt)
            A(f"ds_write_b128 {v(V_LB)}, {v(acc(t, nt), 4)} offset:{off}")
    for t in range(1, 4):
        A(f"""
        s_sub_u32 s34, {s(S_U)}, {t}
        s_and_b32 s34, s34, 3
        s_mul_i32 s34, s34, 3072
        v_add_u32 {v(V_B + t)}, s34, {v(V_A)}
        """)
    A("s_waitcnt lgkmcnt(0)\ns_barrier")
    RD = HB
    for t in range(1, 4):
        for nt in range(5):
            b, off = foff(5 * (t - 1) + nt)
            A(f"ds_read_b128 {v(RD + (t - 1) * 20 + 4 * nt, 4)}, {v(V_B + t)} offset:{off}")
    A("s_mov_b32 s35, 0xffff0000")
    for t in range(1, 4):
        A(f"s_waitcnt lgkmcnt({15 - 5 * t})")
        for q in range(10):
            A(f"v_pk_add_f32 {v(ACC + 2 * q, 2)}, {v(ACC + 2 * q, 2)}, {v(RD + (t - 1) * 20 + 2 * q, 2)}")
    A("s_waitcnt vmcnt(0)")
    T0 = WA
    for nt in range(5):
        x0, x1 = V_X + 2 * nt, V_X + 2 * nt + 1
        r = acc(0, nt)
        A(f"""
        v_lshlrev_b32 {v(T0)}, 16, {v(x0)}
        v_and_b32 {v(T0 + 1)}, s35, {v(x0)}
        v_lshlrev_b32 {v(T0 + 2)}, 16, {v(x1)}
        v_and_b32 {v(T0 + 3)}, s35, {v(x1)}
        v_pk_add_f32 {v(r, 2)}, {v(r, 2)}, {v(T0, 2)}
        v_pk_add_f32 {v(r + 2, 2)}, {v(r + 2, 2)}, {v(T0 + 2, 2)}
        v_cvt_pk_bf16_f32 {v(r)}, {v(r)}, {v(r + 1)}
        v_cvt_pk_bf16_f32 {v(r + 1)}, {v(r + 2)}, {v(r + 3)}
        buffer_store_dwordx2 {v(r, 2)}, {v(V_O)}, s[4:7], 0 offen offset:{32 * nt}
        """)
    stamp2(A, 10)
    flush2(A)
    A("s_endpgm")

WO = 12
def wo(hh, nb, nt): return WO + ((hh * 2 + nb) * 5 + nt) * 4
def m_prep(A):
    L = V_L
    A(f"""
    s_mov_b32 s4, s60
    s_mov_b32 s5, s61
    s_mov_b32 s6, {WO_BYTES}
    s_mov_b32 s7, 0x20000
    s_mul_i32 s32, {s(S_RB)}, {40 * 1280}
    s_mul_i32 s34, {s(S_U)}, 320
    s_add_u32 s32, s32, s34
    s_mul_i32 s33, {s(S_U)}, {WOSZ}
    s_mov_b64 exec, 0xfffff
    """)
    for r in range(40):
        A(f"""
        s_add_u32 m0, s33, {320 * r}
        s_nop 0
        buffer_load_dwordx4 {v(V_A)}, s[4:7], s32 offen lds
        s_add_u32 s32, s32, 1280
        """)
    A(f"""
    s_mov_b64 exec, -1
    v_lshrrev_b32 v92, 4, {v(L)}
    v_bfe_u32 v93, {v(L)}, 2, 2
    v_lshl_add_u32 v93, v92, 3, v93
    v_mul_u32_u24 v93, 320, v93
    v_and_b32 v94, 3, {v(L)}
    v_lshl_add_u32 v93, v94, 3, v93
    v_add_u32 v93, s33, v93
    v_cmp_le_u32 s[68:69], 2, v92
    v_cmp_eq_u32 s[56:57], 3, v92
    s_waitcnt vmcnt(0)
    """)
    for hh in range(2):
        for nb in range(2):
            for nt in range(5):
                for p in range(2):
                    A(f"ds_read_b64_tr_b16 {v(wo(hh, nb, nt) + 2 * p, 2)}, v93 offset:{6400 * hh + 1280 * p + 160 * nb + 32 * nt}")
            A("s_waitcnt lgkmcnt(0)")
    for f in range(20):
        for r in range(4):
            A(f"v_cndmask_b32 {v(WO + 4 * f + r)}, {v(WO + 4 * f + r)}, 0, {'s[56:57]' if r < 2 else 's[68:69]'}")

def m_duty(A):
    L = V_L
    P = 96
    X = 224
    A(f"""
    s_lshl_b32 {s(S_HD)}, {s(S_RB)}, 1
    s_lshr_b32 s34, {s(S_U)}, 1
    s_add_u32 {s(S_HD)}, {s(S_HD)}, s34
    s_lshl_b32 s33, {s(S_HD)}, 4
    s_and_b32 s34, {s(S_U)}, 1
    s_lshl_b32 s34, s34, 3
    s_add_u32 s33, s33, s34
    s_mul_i32 s33, s33, {KVP_BLK}
    s_add_u32 s33, s33, {KVP}
    v_mul_u32_u24 {v(X)}, {KVP_BLK}, {v(L)}
    s_add_u32 s34, s33, 64
    v_add_u32 {v(X)}, s34, {v(X)}
    v_add_u32 {v(X + 1)}, 1024, {v(V_A)}
    v_mov_b32 {v(X + 2)}, {s(S_BIG)}
    v_cmp_gt_u32 vcc, 48, {v(L)}
    s_mul_i32 s34, {s(S_U)}, 1792
    s_add_u32 s34, s34, {EXA}
    v_cndmask_b32 {v(X + 1)}, {v(X + 2)}, {v(X + 1)}, vcc
    v_add_u32 {v(X + 4)}, s34, {v(V_A)}
    v_add_u32 {v(X + 5)}, {EXA}, {v(V_A)}
    v_mov_b32 {v(X + 6)}, {LFL + 4 * F_EX}
    s_mul_i32 s34, {s(S_U)}, 1600
    s_add_u32 s34, s34, {IMG}
    v_lshlrev_b32 {v(X + 7)}, 3, {v(L)}
    v_add_u32 {v(X + 7)}, s34, {v(X + 7)}
    v_lshrrev_b32 {v(X + 2)}, 4, {v(L)}
    v_bfe_u32 {v(X + 3)}, {v(L)}, 2, 2
    v_lshl_add_u32 {v(X + 3)}, {v(X + 2)}, 3, {v(X + 3)}
    v_mul_u32_u24 {v(X + 3)}, 40, {v(X + 3)}
    v_add_u32 {v(X + 8)}, s34, {v(X + 3)}
    v_and_b32 {v(X + 3)}, 3, {v(L)}
    v_lshl_add_u32 {v(X + 9)}, {v(X + 3)}, 4, {v(X + 8)}
    v_and_b32 {v(X + 3)}, 1, {v(L)}
    v_lshl_add_u32 {v(X + 10)}, {v(X + 3)}, 4, {v(X + 8)}
    v_lshl_add_u32 {v(X + 11)}, {v(X + 3)}, 3, {v(X + 8)}
    """)
    A(f"""
    v_bfe_u32 {v(X + 3)}, {v(L)}, 2, 2
    v_cmp_gt_u32 s[48:49], 3, {v(X + 2)}
    v_cmp_gt_u32 s[50:51], 2, {v(X + 2)}
    v_cmp_gt_u32 s[52:53], 3, {v(X + 3)}
    v_cmp_gt_u32 s[54:55], 2, {v(X + 3)}
    """)
    A(f"""
    s_lshr_b32 s34, {s(S_RB)}, 2
    s_mul_i32 s34, s34, 5
    s_mul_i32 s35, {s(S_U)}, 40
    s_add_u32 s34, s34, s35
    s_mul_i32 s30, s34, 5120
    s_and_b32 s34, {s(S_RB)}, 3
    s_lshl_b32 s34, s34, 8
    s_add_u32 s30, s30, s34
    s_add_u32 s30, s30, {MF}
    v_and_b32 {v(X + 3)}, 15, {v(L)}
    v_lshlrev_b32 {v(X + 3)}, 4, {v(X + 3)}
    v_mul_u32_u24 {v(X + 12)}, 5120, {v(X + 2)}
    v_add_u32 {v(X + 12)}, {v(X + 12)}, {v(X + 3)}
    v_lshl_add_u32 {v(X + 13)}, {v(X + 2)}, 3, {v(X + 3)}
    v_add_u32 {v(X + 13)}, {4 * 5120}, {v(X + 13)}
    v_mov_b32 {v(X + 14)}, {s(S_BIG)}
    v_cmp_gt_u32 vcc, 32, {v(L)}
    s_mul_i32 s34, {s(S_HD)}, 40
    s_and_b32 s35, {s(S_U)}, 1
    s_mul_i32 s35, s35, {4 * 1280}
    s_add_u32 s34, s34, s35
    s_add_u32 s31, s34, {ZB - 36 * 8}
    v_cndmask_b32 {v(X + 13)}, {v(X + 14)}, {v(X + 13)}, vcc
    v_lshlrev_b32 {v(X + 14)}, 3, {v(L)}
    """)
    stamp2(A, 1)
    poll(A, "L_m_kv", v(X), 8)
    stamp2(A, 2)
    A("s_mov_b32 s70, 0")
    A.label("L_m_again")
    A("s_mov_b32 s32, s33")
    for i in range(8):
        A(f"buffer_load_dwordx4 {v(P + 8 * i, 4)}, {v(V_A)}, s[12:15], s32 offen sc1")
        A(f"buffer_load_dwordx4 {v(P + 8 * i + 4, 4)}, {v(X + 1)}, s[12:15], s32 offen sc1")
        if i < 7: A(f"s_add_u32 s32, s32, {KVP_BLK}")
    A("s_waitcnt vmcnt(0)")
    for h in range(2):
        A(f"v_and_b32 {v(X + 2 + h)}, {v(P + 4 * h)}, {v(P + 8 + 4 * h)}")
        for i in range(2, 8):
            A(f"v_and_b32 {v(X + 2 + h)}, {v(X + 2 + h)}, {v(P + 8 * i + 4 * h)}")
    A(f"""
    v_and_b32 {v(X + 2)}, 1, {v(X + 2)}
    v_and_b32 {v(X + 3)}, 1, {v(X + 3)}
    v_cmp_gt_u32 vcc, 41, {v(L)}
    s_add_u32 s70, s70, 1
    s_nop 0
    v_cndmask_b32 {v(X + 3)}, 1, {v(X + 3)}, vcc
    v_and_b32 {v(X + 2)}, {v(X + 2)}, {v(X + 3)}
    v_cmp_ne_u32 vcc, 0, {v(X + 2)}
    s_nop 4
    s_cmp_eq_u64 vcc, -1
    s_cbranch_scc1 L_m_valid
    s_cmp_lt_u32 s70, {BOUND >> 4}
    s_cbranch_scc1 L_m_again
    L_m_valid:
    """)
    stamp2(A, 10)
    for step in (4, 2, 1):
        for i in range(step):
            for q in range(4):
                A(f"v_pk_add_f32 {v(P + 8 * i + 2 * q, 2)}, {v(P + 8 * i + 2 * q, 2)}, {v(P + 8 * (i + step) + 2 * q, 2)}")
    A(f"""
    ds_write_b128 {v(X + 4)}, {v(P, 4)}
    s_mov_b32 s34, -1
    s_mov_b32 s35, 0xffff
    s_mov_b64 exec, s[34:35]
    ds_write_b128 {v(X + 4)}, {v(P + 4, 4)} offset:1024
    s_mov_b64 exec, -1
    s_waitcnt lgkmcnt(0)
    """)
    A(lds_set_text(v(V_FL), F_EX))
    A(f"""
    s_mov_b32 s71, 0
    L_m_ex_spin:
    ds_read_b128 {v(P + 8, 4)}, {v(X + 6)}
    s_add_u32 s71, s71, 1
    s_waitcnt lgkmcnt(0)
    v_and_b32 {v(P + 8)}, {v(P + 8)}, {v(P + 9)}
    v_and_b32 {v(P + 10)}, {v(P + 10)}, {v(P + 11)}
    v_and_b32 {v(P + 8)}, {v(P + 8)}, {v(P + 10)}
    s_nop 0
    v_readfirstlane_b32 s34, {v(P + 8)}
    s_nop 1
    s_cmp_lg_u32 s34, 0
    s_cbranch_scc1 L_m_ex_ok
    s_cmp_lt_u32 s71, {BOUND}
    s_cbranch_scc1 L_m_ex_spin
    L_m_ex_ok:
    """)
    for i in range(4):
        A(f"ds_read_b128 {v(P + 8 * i, 4)}, {v(X + 5)} offset:{1792 * i}")
        A(f"ds_read_b128 {v(P + 8 * i + 4, 4)}, {v(X + 5)} offset:{1792 * i + 1024}")
    for hh in range(2):
        A(f"s_waitcnt lgkmcnt({4 - 4 * hh})")
        for q in range(4):
            A(f"v_pk_add_f32 {v(P + 16 * hh + 2 * q, 2)}, {v(P + 16 * hh + 2 * q, 2)}, {v(P + 16 * hh + 8 + 2 * q, 2)}")
        for q in range(4):
            A(f"v_cvt_pk_bf16_f32 {v(P + 32 + 4 * hh + q)}, {v(P + 16 * hh + 2 * q)}, {v(P + 16 * hh + 2 * q + 1)}")
    stamp2(A, 11)
    A(f"""
    ds_write_b64 {v(X + 7)}, {v(P + 32, 2)}
    ds_write_b64 {v(X + 7)}, {v(P + 36, 2)} offset:800
    s_mov_b32 s34, -1
    s_mov_b32 s35, 15
    s_mov_b64 exec, s[34:35]
    ds_write_b64 {v(X + 7)}, {v(P + 34, 2)} offset:512
    ds_write_b64 {v(X + 7)}, {v(P + 38, 2)} offset:{800 + 512}
    s_mov_b64 exec, -1
    s_cmp_ge_u32 {s(S_U)}, 2
    s_cbranch_scc0 L_m_z0
    v_mov_b32 {v(P + 34)}, {v(P + 38)}
    v_mov_b32 {v(P + 35)}, {v(P + 39)}
    L_m_z0:
    s_mov_b32 s34, 0
    s_mov_b32 s35, 0x1f0
    s_mov_b64 exec, s[34:35]
    """)
    for c in range(4):
        A(f"buffer_store_dwordx2 {v(P + 34, 2)}, {v(X + 14)}, s[12:15], s31 offen sc1")
        if c < 3: A("s_add_u32 s31, s31, 1280")
    A("s_mov_b64 exec, -1\ns_waitcnt lgkmcnt(0)")
    AF = P + 40
    src = [(X + 9, 0), (X + 8, 800 + 8), (X + 9, 8), (X + 10, 800), (X + 11, 800 + 24)]
    for f, (reg, off) in enumerate(src):
        for p in range(2):
            A(f"ds_read_b64_tr_b16 {v(AF + 4 * f + 2 * p, 2)}, {v(reg)} offset:{off + 160 * p}")
    rows = ["s[52:53]", "~52", "s[54:55]", "~54", "s[54:55]"]
    A("s_waitcnt lgkmcnt(0)")
    for f in range(5):
        for p in range(2):
            e = "s[48:49]" if p == 0 else "s[50:51]"
            r = rows[f]
            if r.startswith("~"):
                n = int(r[1:])
                A(f"s_andn2_b64 s[56:57], {e}, s[{n}:{n + 1}]")
            else:
                A(f"s_and_b64 s[56:57], {e}, {r}")
            for k in range(2):
                A(f"v_cndmask_b32 {v(AF + 4 * f + 2 * p + k)}, 0, {v(AF + 4 * f + 2 * p + k)}, s[56:57]")
    A("s_nop 1")
    stamp2(A, 12)
    DM = [P + 60, 12 + 0]
    D0 = P + 60
    def unit(nb, nt): return D0 + 12 * nt
    for nb in range(2):
        for nt in range(5):
            d = unit(nb, nt)
            A(f"v_mfma_f32_16x16x32_bf16 {v(d, 4)}, {v(AF, 4)}, {v(wo(0, nb, nt), 4)}, 0")
            A(f"v_mfma_f32_16x16x32_bf16 {v(d + 4, 4)}, {v(AF + 8, 4)}, {v(wo(0, nb, nt), 4)}, 0")
            A(f"v_mfma_f32_16x16x32_bf16 {v(d + 8, 4)}, {v(AF + 16, 4)}, {v(wo(1, nb, nt), 4)}, 0")
        for nt in range(5):
            d = unit(nb, nt)
            A(f"v_mfma_f32_16x16x32_bf16 {v(d, 4)}, {v(AF + 4, 4)}, {v(wo(1, nb, nt), 4)}, {v(d, 4)}")
            A(f"v_mfma_f32_16x16x32_bf16 {v(d + 4, 4)}, {v(AF + 12, 4)}, {v(wo(1, nb, nt), 4)}, {v(d + 4, 4)}")
        A("s_add_u32 s35, s30, 4096")
        for nt in range(5):
            d = unit(nb, nt)
            if nt == 4: A("s_nop 4")
            A(f"""
            v_cvt_pk_bf16_f32 {v(d + 8)}, {v(d + 8)}, {v(d + 9)}
            v_cvt_pk_bf16_f32 {v(d + 9)}, {v(d + 10)}, {v(d + 11)}
            v_cvt_pk_bf16_f32 {v(d)}, {v(d)}, {v(d + 1)}
            v_cvt_pk_bf16_f32 {v(d + 1)}, {v(d + 2)}, {v(d + 3)}
            v_cvt_pk_bf16_f32 {v(d + 2)}, {v(d + 4)}, {v(d + 5)}
            v_cvt_pk_bf16_f32 {v(d + 3)}, {v(d + 6)}, {v(d + 7)}
            """)
            so = "s30" if nt < 4 else "s35"
            off = f" offset:{1024 * nt}" if nt < 4 else ""
            A(f"buffer_store_dwordx4 {v(d, 4)}, {v(X + 12)}, s[12:15], {so} offen{off} sc1")
            A(f"buffer_store_dwordx2 {v(d + 8, 2)}, {v(X + 13)}, s[12:15], {so} offen{off} sc1")
        if nb == 0: A(f"s_add_u32 s30, s30, {20 * 5120}\ns_nop 1")
    A(f"""
    s_lshl_b32 s34, {s(S_RB)}, 2
    s_add_u32 s34, s34, {s(S_U)}
    s_lshl_b32 s34, s34, 7
    s_add_u32 s34, s34, {F2}
    v_mov_b32 {v(X + 2)}, 0
    v_mov_b32 {v(X + 3)}, 1
    """)
    stamp2(A, 13)
    A(f"""
    s_waitcnt vmcnt(0)
    s_mov_b64 exec, 1
    buffer_store_dword {v(X + 3)}, {v(X + 2)}, s[12:15], s34 offen sc1
    s_mov_b64 exec, -1
    """)
    stamp2(A, 3)

def aux(A):
    L = V_L
    PQ = 12; ZF = 92; DEN = 112; TT = 128
    def pq(k, t): return PQ + (k * 4 + t) * 4
    if SETPRIO: A("s_setprio 3")
    A(f"s_cmp_lg_u32 {s(S_TYPE)}, 3\ns_cbranch_scc1 L_p2_nom")
    m_duty(A)
    A.label("L_p2_nom")
    A(f"""
    s_lshr_b32 s34, {s(S_R)}, 1
    s_lshl_b32 s34, s34, 4
    s_lshr_b32 s35, {s(S_U)}, 1
    s_add_u32 s34, s34, s35
    s_add_u32 s34, s34, 9
    s_lshl_b32 s34, s34, 7
    s_add_u32 s34, s34, {F1}
    v_mov_b32 v92, s34
    """)
    stamp2(A, 4)
    poll(A, "L_p2_q", "v92", 1)
    stamp2(A, 5)
    A(f"""
    s_mul_i32 s34, {s(S_R)}, 20
    s_mul_i32 s35, {s(S_U)}, 5
    s_add_u32 s34, s34, s35
    s_lshl_b32 s32, s34, 12
    s_add_u32 s32, s32, {PQF}
    """)
    for k in range(5):
        for t in range(4):
            A(f"buffer_load_dwordx4 {v(pq(k, t), 4)}, {v(V_B + t)}, s[12:15], s32 offen")
        if k < 4: A("s_add_u32 s32, s32, 4096")
    A(f"""
    v_mov_b32 v93, {LFL}
    s_cmp_lg_u32 {s(S_U)}, 0
    s_cbranch_scc1 L_p2_mw
    s_mul_i32 s33, {s(S_N)}, 1280
    s_add_u32 s33, s33, {ZB}
    v_add_u32 v144, 1024, {v(V_A)}
    v_mov_b32 v145, {s(S_BIG)}
    v_cmp_gt_u32 s[56:57], 16, {v(L)}
    s_mov_b32 s71, 0
    s_nop 0
    v_cndmask_b32 v144, v145, v144, s[56:57]
    L_p2_z_spin:
    buffer_load_dwordx4 v[92:95], {v(V_A)}, s[12:15], s33 offen sc1
    buffer_load_dwordx4 v[96:99], v144, s[12:15], s33 offen sc1
    s_waitcnt vmcnt(0)
    v_min_u32 v146, v92, v93
    v_min3_u32 v146, v146, v94, v95
    v_min_u32 v147, v96, v97
    v_min3_u32 v147, v147, v98, v99
    v_cndmask_b32 v147, 1, v147, s[56:57]
    v_min_u32 v146, v146, v147
    v_cmp_ne_u32 vcc, 0, v146
    s_add_u32 s71, s71, 1
    s_nop 3
    s_cmp_eq_u64 vcc, -1
    s_cbranch_scc1 L_p2_z_ok
    s_cmp_lt_u32 s71, {BOUND}
    s_cbranch_scc1 L_p2_z_spin
    L_p2_z_ok:
    v_add_u32 v146, {ZL}, {v(V_A)}
    ds_write_b128 v146, v[92:95]
    s_mov_b64 exec, 0xffff
    ds_write_b128 v146, v[96:99] offset:1024
    s_mov_b64 exec, -1
    s_waitcnt lgkmcnt(0)
    v_mov_b32 v93, {LFL}
    """)
    A(lds_set_text("v93", F_MSEEN))
    A("s_branch L_p2_mok")
    A.label("L_p2_mw")
    lds_wait(A, "L_p2_ml", "v93", F_MSEEN)
    A.label("L_p2_mok")
    stamp2(A, 6)
    A(f"""
    v_lshrrev_b32 v144, 4, {v(L)}
    v_mul_u32_u24 v145, 80, v144
    s_mul_i32 s34, {s(S_U)}, 320
    s_add_u32 s34, s34, {ZL}
    v_add_u32 v145, s34, v145
    """)
    for k in range(5):
        A(f"ds_read_b128 {v(ZF + 4 * k, 4)}, v145 offset:{16 * k}")
    A(f"""
    v_bfe_u32 v146, {v(L)}, 2, 2
    v_cmp_eq_u32 s[56:57], v146, v144
    v_and_b32 v146, 3, {v(L)}
    v_cmp_eq_u32 s[68:69], 0, v146
    v_cmp_eq_u32 s[70:71], 1, v146
    s_nop 1
    s_and_b64 s[68:69], s[68:69], s[56:57]
    s_and_b64 s[56:57], s[70:71], s[56:57]
    s_waitcnt vmcnt(0) lgkmcnt(0)
    """)
    for k in range(5):
        for r in range(4):
            hh = 0 if k < 2 else (1 if k > 2 else (0 if r < 2 else 1))
            A(f"v_cndmask_b32 {v(ZF + 4 * k + r)}, 0, {v(ZF + 4 * k + r)}, {'s[68:69]' if hh == 0 else 's[56:57]'}")
    A("s_nop 1")
    for k in range(5):
        for t in range(4):
            c = "0" if k == 0 else v(DEN + 4 * t, 4)
            A(f"v_mfma_f32_16x16x32_bf16 {v(DEN + 4 * t, 4)}, {v(ZF + 4 * k, 4)}, {v(pq(k, t), 4)}, {c}")
    A(f"s_mov_b32 s34, {hex(0x358637bd)}\ns_nop 6")
    for t in range(4):
        for hh in range(2):
            A(f"v_add_f32 {v(DEN + 4 * t + hh)}, s34, {v(DEN + 4 * t + hh)}")
    for t in range(4):
        for hh in range(2):
            A(f"v_rcp_f32 {v(DEN + 4 * t + hh)}, {v(DEN + 4 * t + hh)}")
    A("s_mov_b32 s35, 0xffff0000")
    stamp2(A, 7)
    for k in range(5):
        for t in range(4):
            r0 = pq(k, t)
            T = TT + 8 * ((k * 4 + t) & 1)
            for r in range(4):
                A(f"v_lshlrev_b32 {v(T + 2 * r)}, 16, {v(r0 + r)}\nv_and_b32 {v(T + 2 * r + 1)}, s35, {v(r0 + r)}")
            for r in range(4):
                hh = 0 if k < 2 else (1 if k > 2 else (0 if r < 2 else 1))
                sel = "op_sel_hi:[1,0]" if hh == 0 else "op_sel:[0,1] op_sel_hi:[1,1]"
                A(f"v_pk_mul_f32 {v(T + 2 * r, 2)}, {v(T + 2 * r, 2)}, {v(DEN + 4 * t, 2)} {sel}")
            for r in range(4):
                A(f"v_cvt_pk_bf16_f32 {v(r0 + r)}, {v(T + 2 * r)}, {v(T + 2 * r + 1)}")
    stamp2(A, 8)
    lds_wait(A, "L_p2_fr", v(V_FL), F_FREE)
    for k in range(5):
        for t in range(4):
            b, off = foff(4 * k + t)
            A(f"ds_write_b128 {v(V_LB + b)}, {v(pq(k, t), 4)} offset:{off}")
    A("s_waitcnt lgkmcnt(0)")
    A(lds_set_text(v(V_FL), F_READY))
    A("s_waitcnt lgkmcnt(0)")
    stamp2(A, 9)
    flush2(A)
    A("s_endpgm")

def side_entry(A, fused):
    L = V_L
    if fused:
        A("v_mov_b32 v92, 0")
        A(f"""
        s_mov_b32 s71, 0
        L_p2_cnt_spin:
        buffer_load_dword v93, v92, s[16:19], 0 offen sc1
        s_waitcnt vmcnt(0)
        v_readfirstlane_b32 s34, v93
        s_add_u32 s71, s71, 1
        s_cmp_ge_u32 s34, 256
        s_cbranch_scc1 L_p2_cnt_ok
        s_cmp_lt_u32 s71, {BOUND}
        s_cbranch_scc1 L_p2_cnt_spin
        L_p2_cnt_ok:
        v_lshlrev_b32 v92, 2, {v(L)}
        v_add_u32 v92, {LFL}, v92
        v_mov_b32 v93, 0
        ds_write_b32 v92, v93
        """)
    common(A)
    A(f"s_cmp_lt_u32 {s(S_W)}, 4\ns_cbranch_scc1 L_p2_side_b")
    m_prep(A)
    A.label("L_p2_side_b")
    A("s_waitcnt vmcnt(0) lgkmcnt(0)\ns_barrier")


def body(A):
    A.label("L_p2_go")
    stamp2(A, 0)
    if PROF2 and Prof.on:
        A("v_writelane_b32 v0, s72, 20\nv_writelane_b32 v0, s88, 21\nv_writelane_b32 v0, s90, 22")
    A(f"s_cmp_ge_u32 {s(S_W)}, 4\ns_cbranch_scc1 L_p2_aux")
    compute(A)
    A.label("L_p2_aux")
    aux(A)

def tail(A, role):
    if role == "main":
        common(A)
        body(A)
    else:
        side_entry(A, True)
        A("s_branch L_p2_go")

def gen_standalone(A, KN):
    L = V_L
    A(f".globl {KN}\n.p2align 8\n.type {KN},@function\n{KN}:")
    A(f"s_cmp_ge_u32 s2, 256\ns_cbranch_scc1 L_end_{KN}")
    A(f"""
    s_load_dwordx4 s[36:39], s[0:1], 0
    s_load_dwordx4 s[44:47], s[0:1], 64
    s_load_dwordx2 s[60:61], s[0:1], 16
    s_load_dwordx2 s[64:65], s[0:1], 56
    v_and_b32 {v(L)}, 63, v0
    v_lshrrev_b32 v2, 6, v0
    s_nop 0
    v_readfirstlane_b32 {s(S_W)}, v2
    """)
    p1.decode(A)
    A(f"""
    s_waitcnt lgkmcnt(0)
    s_mov_b32 s12, s46
    s_mov_b32 s13, s47
    s_mov_b32 s14, {WS_USED}
    s_mov_b32 s15, 0x20000
    v_lshlrev_b32 v92, 2, {v(L)}
    v_add_u32 v92, {LFL}, v92
    v_mov_b32 v93, 0
    ds_write_b32 v92, v93
    s_mov_b32 {s(S_TYPE)}, 2
    s_cmp_eq_u32 {s(p1.S_CIDX)}, 15
    s_cbranch_scc0 L_k2_main
    s_mov_b32 {s(S_TYPE)}, 3
    """)
    side_entry(A, False)
    A("s_branch L_p2_go")
    A.label("L_k2_main")
    common(A)
    A("s_waitcnt lgkmcnt(0)\ns_barrier")
    body(A)
    A.label(f"L_end_{KN}")
    A("s_endpgm")
```

```python
import sys
from asmlib import Asm, check_hazards, Prof
from common2 import *
import p1

def header(launches):
    h = open('cdna_kernels/' + NAME + '.s.ref').read().split('\n')
    out = []
    for ln in h:
        if ln.startswith('; @launch') or ln.startswith('; Override') or ln.startswith('; grid='): continue
        if not ln.startswith(';'): break
        out.append(ln)
    for k, g, b, lds in launches:
        if k == NAME + "_kernel":
            out.append(f"; @launch grid=({g},1,1) block=({b},1,1) lds={lds}")
        else:
            out.append(f"; @launch kernel={k} grid=({g},1,1) block=({b},1,1) lds={lds}")
    return "\n".join(out) + "\n"

def build(path, mode):
    A = Asm()
    A('.amdgcn_target "amdgcn-amd-amdhsa--gfx950"\n.text')
    launches, descs = [], []
    if mode in ("p1", "split"):
        def tail(A, role):
            p1.lflush(A); Prof.flush(A, 12, "s3", 6); A("s_endpgm")
        p1.gen_p1(A, "k1_kernel", tail)
        launches.append(("k1_kernel", 256, 512, p1.LDS_BYTES)); descs.append(kernel_desc("k1_kernel", 256, 96))
    if mode == "split":
        import p2
        p2.gen_standalone(A, "k2_kernel")
        launches.append(("k2_kernel", 256, 512, p1.LDS_BYTES)); descs.append(kernel_desc("k2_kernel", 256, 96))
    if mode == "fused":
        import p2
        kn = NAME + "_kernel"
        p1.gen_p1(A, kn, p2.tail)
        launches.append((kn, 256, 512, p1.LDS_BYTES)); descs.append(kernel_desc(kn, 256, 96))
    probs = check_hazards(A.lines)
    for p in probs: print("HAZARD", p)
    txt = header(launches) + A.text() + '.section .rodata,"a"\n.p2align 6\n' + "\n.p2align 6\n".join(descs)
    open(path, "w").write(txt)
    return probs

if __name__ == "__main__":
    opts = sys.argv[3:]
    if "prof" in opts: Prof.on = True
    if "nopre" in opts: p1.PRELOAD = False
    if "lprof" in opts: p1.LPROF = True
    if "eprof" in opts: p1.EPROF = True
    if "nopf" in opts: p1.CODEPF = False
    if "noprio" in opts:
        import p2
        p2.SETPRIO = False
    if "prof2" in opts:
        import p2
        p2.PROF2 = True
    build(sys.argv[1], sys.argv[2])
```

```python
NAME = "parallel_sum__linear_attn_block__glu_gated_bilinear__prompt"
HF   = 0x0000000
PQF  = 0x0700000
WDF  = 0x0A00000
NK = 74
KVP  = 0x0F00000
STAT = 0x1000000
CSP  = 0x1200000
KVF  = 0x1050000
KVF_HEAD = 1536
INB  = 0x1060000
KFL  = 0x1070000
FW   = 0x1068000
WS_USED = 0x1300000
KVP_BLK = 1792

X_BYTES   = 2048 * 640 * 2
WQKV_BYTES = 640 * 1920 * 2
WO_BYTES  = 640 * 640 * 2
WG_BYTES  = 640 * 1728 * 2
WD_BYTES  = 1728 * 640 * 2

def kernel_desc(name, vgpr, sgpr, accum=None):
    if accum is None: accum = (vgpr + 3) // 4 * 4
    return f""".amdhsa_kernel {name}
  .amdhsa_next_free_vgpr {vgpr}
  .amdhsa_next_free_sgpr {sgpr}
  .amdhsa_accum_offset {accum}
  .amdhsa_group_segment_fixed_size 0
  .amdhsa_kernarg_size 80
  .amdhsa_user_sgpr_count 2
  .amdhsa_user_sgpr_kernarg_segment_ptr 1
  .amdhsa_system_sgpr_workgroup_id_x 1
  .amdhsa_float_denorm_mode_32 3
.end_amdhsa_kernel
"""
```

```python
from asmlib import Asm, v, a, s, Prof
from common2 import *

ST = " sc1"
WSLOT = 24832
SEGB = 12288 + 128
XBASE = 4 * WSLOT
XSLOT = 16384
CSB = XBASE + 3 * XSLOT
LDS_BYTES = 163840
LFL = LDS_BYTES - 256
ROLES = 0xF876AE549D32CB10

V_L = 1
V_CS = 92; V_DX = 98; V_WR = 100; V_XR = 104; V_DW = 108; V_WF = 112; V_XF = 136; V_ACC = 160
V_WR2 = 152
V_L16 = 155
V_PL = 52
V_ROW = 32

S_W = 3; S_RB = 20; S_CIDX = 21; S_TYPE = 22; S_C = 23
S_WSO = 24; S_WSTEP = 25; S_WDST = 26; S_CSO = 27; S_XDST = 28; S_XWRAP = 29; S_STO = 30; S_IT = 31
S_WWRAP = 48; S_T = 49; S_SH = 50; S_TB = 51; S_ONES = 52; S_XD = 53; S_XSTEP = 54
S_WSO2 = 55; S_XD2 = 56; S_DUTY = 57; S_R = 58; S_N = 59; S_B = 66; S_P = 67
TOUCH = False
PRELOAD = True
CODEPF = True
V_PF = 86

NT = 0
V_TW = 89; V_TX = 90
def acc(T, t): return V_ACC + (T * 3 + t) * 16
def wf(st, t): return V_WF + st * 12 + t * 4
def xf(st, T): return V_XF + st * 8 + T * 4
def rng(b, n): return range(b, b + n)

class LQ:
    def __init__(self, A): self.A = A; self.q = []
    def issue(self, text, regs):
        self.A(text); self.q.append(set(regs))
    def need(self, regs):
        regs = set(regs); last = -1
        for i, r in enumerate(self.q):
            if r & regs: last = i
        if last >= 0:
            self.A(f"s_waitcnt lgkmcnt({len(self.q) - 1 - last})")
            self.q = self.q[last + 1:]
    def drain(self): self.q = []

def reads_for(b, st, j, k2):
    R = []
    it, P = j >> 1, j & 1
    kap = 2 * P + k2
    for T in range(2):
        R.append((f"ds_read_b128 {v(xf(st, T), 4)}, {v(V_XR + kap)} offset:{(it % 3) * XSLOT + T * 4096}", rng(xf(st, T), 4)))
    sg = j % 4
    base = V_WR if sg < 2 else V_WR2
    for t in range(b):
        for p in range(2):
            off = (sg & 1) * WSLOT + (16 * k2 + 4 * p) * 384
            R.append((f"ds_read_b64_tr_b16 {v(wf(st, t) + 2 * p, 2)}, {v(base + t)} offset:{off}", rng(wf(st, t) + 2 * p, 2)))
    return R

def spread(items, n):
    out, k = [], 0
    for i in range(n):
        m = (len(items) - k + (n - i) - 1) // (n - i)
        out.append(items[k:k + m]); k += m
    return out

def kstep(A, lq, b, st, reads, extra, duty, waits=True):
    mf = [(T, t) for t in range(b) for T in range(2)]
    nr = max(1, len(mf) - 2)
    R = spread(list(reads), nr) + [[]] * (len(mf) - nr)
    E = spread(list(extra), len(mf))
    for n, (T, t) in enumerate(mf):
        if waits:
            lq.need(list(rng(wf(st, t), 4)) + list(rng(xf(st, T), 4)))
        A(f"v_mfma_f32_32x32x16_bf16 {v(acc(T, t), 16)}, {v(wf(st, t), 4)}, {v(xf(st, T), 4)}, {v(acc(T, t), 16)}")
        for r in R[n]: lq.issue(*r)
        for e in E[n]:
            e() if callable(e) else A(e)
    if duty is not None:
        lab = A.uid("L_cs")
        A(f"s_cmp_lg_u32 {s(S_DUTY)}, {duty}\ns_cbranch_scc1 {lab}")
        for t in range(b):
            for j in range(4):
                A(f"v_dot2c_f32_bf16 {v(V_CS + t)}, {s(S_ONES)}, {v(wf(st, t) + j)}")
        A.label(lab)

def dma_batch(j, b=3):
    it, P = j >> 1, j & 1
    L = []
    L.append(f"s_add_u32 m0, {s(S_WDST)}, {(j % 4) * WSLOT}\ns_nop 0")
    for q in range(3):
        L.append(f"buffer_load_dwordx4 {v(V_DW + q)}, {s(4, 4)}, {s(S_WSO)} offen offset:{1024 * q} lds")
    g, half = (it + 2, 1) if P == 0 else (it + 3, 0)
    L.append(f"s_add_u32 m0, {s(S_XDST)}, {(g % 3) * XSLOT + half * 1024}\ns_add_u32 {s(S_WSO)}, {s(S_WSO)}, {s(S_WSTEP)}")
    x = f"buffer_load_dwordx4 {v(V_DX + half)}, {s(8, 4)}, {s(S_XD)} offen lds"
    if j == 19 and PRELOAD:
        x += f"\ns_add_u32 m0, {s(S_XDST)}, 1024\ns_nop 0\nbuffer_load_dwordx4 {v(V_DX + 1)}, {s(8, 4)}, {s(S_XD)} offen lds"
    if j >= 15 and PRELOAD:
        x = f"s_cmp_eq_u32 {s(S_TYPE)}, 2\ns_cbranch_scc1 L_nx{b}_{j}\n{x}\nL_nx{b}_{j}:"
    L.append(x)
    if P == 0:
        L.append(f"s_add_u32 {s(S_XD)}, {s(S_XD)}, {s(S_XSTEP)}")
    return L

LPROF = False
def lstamp(A, it, k):
    if not LPROF: return
    A(f"s_memtime s[90:91]\ns_waitcnt lgkmcnt(0)\nv_writelane_b32 v95, s90, {2 * it + k}")

EPROF = False
def estamp(A, k):
    if not EPROF: return
    A(f"s_memtime s[70:71]\ns_waitcnt lgkmcnt(0)\nv_writelane_b32 v0, s70, {k}")

def lflush(A):
    if not LPROF: return
    A(f"""
    s_lshl_b32 s70, s2, 3
    s_add_u32 s70, s70, s3
    s_lshl_b32 s70, s70, 8
    s_add_u32 s70, s70, 0x1500000
    s_mov_b32 s14, 0x2000000
    v_lshlrev_b32 v0, 2, {v(V_L)}
    buffer_store_dword v95, v0, s[12:15], s70 offen
    """)

def lines(fn):
    B = Asm(); fn(B)
    out, pend, grp = [], "", False
    for ln in B.lines:
        if ln == ";[": grp = True
        elif ln == ";]": grp = False; out.append(pend.rstrip()); pend = ""
        elif grp or ln.endswith(":"): pend += ln + "\n"
        else: out.append(pend + ln); pend = ""
    if pend: out.append(pend.rstrip())
    return out

def main_loop(A, b, slow):
    lq = LQ(A)
    for txt, regs in reads_for(b, 0, 0, 0):
        lq.q.append(set(regs))
    X = {}
    def add(j, h, L): X.setdefault((j, h), []).extend(L)
    def w0(name, fn):
        B = Asm(); B(f"s_cmp_lg_u32 {s(S_W)}, 0\ns_cbranch_scc1 {name}"); fn(B); B.label(name)
        return ["\n".join(B.lines)]
    st = lines(row_stats)
    n4 = (len(st) + 3) // 4
    add(0, 1, st[:n4]); add(1, 0, st[n4:2 * n4]); add(1, 1, st[2 * n4:3 * n4]); add(2, 0, st[3 * n4:])
    add(4, 1, w0(f"L_in{b}", arrive))
    for d in range(5):
        def pub(B, d=d):
            lab = f"L_pub{b}_{d}"
            B(f"s_cmp_lg_u32 {s(S_DUTY)}, {d}\ns_cbranch_scc1 {lab}")
            for t in range(3):
                B(f"""
                v_mov_b32 v9, {v(V_CS + t)}
                s_nop 1
                v_permlane32_swap_b32 {v(V_CS + t)}, v9
                s_nop 1
                v_add_f32 v9, v9, {v(V_CS + t)}
                v_or_b32 {v(12 + t)}, 1, v9
                """)
            B(f"""
            v_and_b32 v6, 31, {v(V_L)}
            v_lshlrev_b32 v6, 4, v6
            buffer_store_dwordx3 v[12:14], v6, s[12:15], {s(S_CSO)} offen sc1
            """)
            B.label(lab)
        B = Asm(); pub(B)
        add(2 * d + 2, 1, ["\n".join(B.lines)])
    add(5, 0, [f"s_sub_u32 {s(S_XD)}, {s(S_XD)}, {s(S_XWRAP)}"])
    add(6, 0, [f"s_sub_u32 {s(S_WSO)}, {s(S_WSO)}, {s(S_WWRAP)}"])
    add(10, 1, w0(f"L_ci{b}", lambda B: cnt_issue(B, V_PL)))
    def chk_cnt(B):
        B("s_waitcnt vmcnt(4)")
        check(slow, f"L_cnt{b}", lambda C: cnt_cond(C, V_PL), lambda C: cnt_issue(C, V_PL))(B)
        if PRELOAD: fw_issue(B, V_PL)
    add(12, 0, w0(f"L_cc{b}", chk_cnt))
    if PRELOAD:
        def chk_fw(B):
            B("s_waitcnt vmcnt(12)")
            check(slow, f"L_fw{b}", lambda C: fw_cond(C, V_PL), lambda C: fw_issue(C, V_PL))(B)
        add(15, 0, w0(f"L_fc{b}", chk_fw))
        add(15, 0, [f"s_mov_b32 {s(S_XD)}, {s(S_XD2)}\ns_mov_b32 {s(S_XSTEP)}, 4096",
                    "s_mov_b32 s8, s12\ns_mov_b32 s9, s13\ns_mov_b32 s10, s14",
                    f"v_mov_b32 {v(V_DX)}, {v(V_L16)}\nv_add_u32 {v(V_DX + 1)}, 1024, {v(V_L16)}"])
        add(16, 0, [f"s_mov_b32 {s(S_WSO)}, {s(S_WSO2)}\ns_mov_b32 {s(S_WSTEP)}, 6144",
                    "s_mov_b32 s4, s12\ns_mov_b32 s5, s13\ns_mov_b32 s6, s14"] +
                   [f"v_mov_b32 {v(V_DW + q)}, {v(V_L16)}" for q in range(3)])
    else:
        add(15, 0, [f"s_mov_b32 {s(S_XD)}, 0x7f000000\ns_mov_b32 {s(S_XSTEP)}, 0"])
        add(16, 0, [f"s_mov_b32 {s(S_WSO)}, 0x7f000000\ns_mov_b32 {s(S_WSTEP)}, 0"])
    if CODEPF:
        add(14, 1, [code_touch()])
    add(16, 1, lines(epi_loads))
    cp = center_prep(b, slow)
    n2 = (len(cp) + 1) // 2
    add(18, 1, cp[:n2]); add(19, 0, cp[n2:])
    for j in range(20):
        it = j >> 1
        duty = it if it < 5 else None
        kstep(A, lq, b, 0, reads_for(b, 1, j, 1), X.get((j, 0), []), duty)
        nv = {0: 9 + NT, 1: 8 + NT, 2: 10 + NT, 3: 9, 16: 7, 17: 13, 18: 3}.get(j, 8)
        A(f"s_waitcnt vmcnt({nv}) lgkmcnt(0)" if j < 19 else "s_waitcnt lgkmcnt(0)")
        lq.drain()
        A("s_barrier")
        lstamp(A, it, j & 1)
        nxt = reads_for(b, 0, j + 1, 0) if j < 19 else []
        E = dma_batch(j, b) + X.get((j, 1), [])
        kstep(A, lq, b, 1, nxt, E, duty, waits=False)

def code_touch():
    return f"s_mov_b64 exec, 3\nglobal_load_dword {v(V_PF + 2)}, {v(V_PF, 2)}, off\ns_mov_b64 exec, -1"

def code_prefetch(A, KN):
    A(f"""
    s_getpc_b64 s[68:69]
    L_pc_{KN}:
    s_lshr_b32 s32, s2, 3
    s_lshl_b32 s32, s32, 3
    s_add_u32 s32, s32, {s(S_W)}
    s_lshl_b32 s32, s32, 1
    v_add_u32 {v(V_PF + 2)}, s32, {v(V_L)}
    v_lshlrev_b32 {v(V_PF + 2)}, 7, {v(V_PF + 2)}
    v_min_u32 {v(V_PF + 2)}, L_end_{KN}-L_pc_{KN}, {v(V_PF + 2)}
    v_add_co_u32 {v(V_PF)}, vcc, s68, {v(V_PF + 2)}
    v_mov_b32 {v(V_PF + 1)}, s69
    s_nop 0
    v_addc_co_u32 {v(V_PF + 1)}, vcc, 0, {v(V_PF + 1)}, vcc
    """)
    A(code_touch())

def decode(A):
    A(f"""
    s_and_b32 s32, s2, 7
    s_lshr_b32 s33, s2, 3
    s_and_b32 s34, s32, 1
    s_lshl_b32 {s(S_RB)}, s34, 3
    s_and_b32 s34, s33, 7
    s_add_u32 {s(S_RB)}, {s(S_RB)}, s34
    s_lshr_b32 s34, s32, 1
    s_lshl_b32 s34, s34, 2
    s_lshr_b32 s35, s33, 3
    s_add_u32 s34, s34, s35
    s_lshl_b32 s34, s34, 2
    s_mov_b32 s68, {hex(ROLES & 0xffffffff)}
    s_mov_b32 s69, {hex(ROLES >> 32)}
    s_lshr_b64 s[68:69], s[68:69], s34
    s_and_b32 {s(S_CIDX)}, s68, 15
    s_lshl_b32 {s(S_R)}, s32, 2
    s_and_b32 s34, s33, 3
    s_add_u32 {s(S_R)}, {s(S_R)}, s34
    s_lshr_b32 {s(S_N)}, s33, 2
    s_lshr_b32 {s(S_P)}, {s(S_RB)}, 3
    """)

def row_loads(A):
    L = V_L
    A(f"""
    s_lshl_b32 s32, s2, 3
    s_add_u32 s32, s32, {s(S_W)}
    s_mul_i32 s33, s32, 1280
    v_lshlrev_b32 v6, 4, {v(L)}
    v_lshlrev_b32 v7, 2, {v(L)}
    buffer_load_dwordx4 {v(V_ROW, 4)}, v6, s[8:11], s33 offen
    buffer_load_dword {v(V_ROW + 4)}, v7, s[8:11], s33 offen offset:1024
    """)

def zero_words(A, side):
    L = V_L
    lab = A.uid("L_nf")
    A(f"""
    v_mov_b32 v8, 0
    v_mov_b32 v9, 0
    v_mov_b32 v10, 0
    v_mov_b32 v11, 0
    s_cmp_lg_u32 {s(S_W)}, 0
    s_cbranch_scc1 {lab}
    s_lshl_b32 s34, s2, 7
    s_add_u32 s34, s34, {INB}
    v_and_b32 v6, 3, {v(L)}
    v_lshlrev_b32 v6, 4, v6
    v_bfe_u32 v7, {v(L)}, 2, 1
    v_mul_u32_u24 v7, {KFL - INB}, v7
    v_add_u32 v6, v6, v7
    s_mov_b64 exec, 0xff
    buffer_store_dwordx4 v[8:11], v6, s[12:15], s34 offen sc1
    s_mov_b64 exec, -1
    {lab}:
    """)
    if not side:
        lab = A.uid("L_nz")
        A(f"""
        s_mul_i32 s33, {s(S_P)}, 5
        s_add_u32 s33, s33, {s(S_DUTY)}
        s_mul_i32 s34, {s(S_CIDX)}, 10
        s_add_u32 s33, s33, s34
        s_lshl_b32 s33, s33, 2
        s_lshr_b32 s34, {s(S_W)}, 1
        s_add_u32 s33, s33, s34
        s_lshl_b32 s33, s33, 9
        s_add_u32 {s(S_CSO)}, s33, {CSP}
        s_cmp_gt_u32 {s(S_DUTY)}, 4
        s_cbranch_scc1 {lab}
        v_lshlrev_b32 v7, 4, {v(L)}
        s_mov_b64 exec, 0xffffffff
        buffer_store_dwordx4 v[8:11], v7, s[12:15], {s(S_CSO)} offen sc1
        s_mov_b64 exec, -1
        {lab}:
        """)
        lab = A.uid("L_nk")
        A(f"""
        s_cmp_lg_u32 {s(S_TYPE)}, 2
        s_cbranch_scc1 {lab}
        s_lshl_b32 s33, {s(S_C)}, 3
        s_add_u32 s33, s33, {s(S_W)}
        s_lshl_b32 s33, s33, 4
        s_add_u32 s33, s33, {s(S_RB)}
        s_mul_i32 s33, s33, {KVP_BLK}
        s_add_u32 s33, s33, {KVP}
        v_lshlrev_b32 v7, 4, {v(L)}
        s_mov_b32 s34, -1
        s_mov_b32 s35, 0xffff
        buffer_store_dwordx4 v[8:11], v7, s[12:15], s33 offen sc1
        s_mov_b64 exec, s[34:35]
        buffer_store_dwordx4 v[8:11], v7, s[12:15], s33 offen offset:1024 sc1
        s_mov_b64 exec, -1
        {lab}:
        """)

NOCOUNT = False
NCNT = 4
def arrive(A):
    if NOCOUNT: return
    A(f"""
    s_lshr_b32 s34, s2, 3
    s_and_b32 s34, s34, {NCNT - 1}
    s_lshl_b32 s34, s34, 6
    v_mov_b32 v6, s34
    v_mov_b32 v7, 1
    s_mov_b64 exec, 1
    buffer_atomic_add v7, v6, s[16:19], 0 offen sc1
    s_mov_b64 exec, -1
    """)

def count_in(A):
    lab = A.uid("L_cnt")
    A(f"s_cmp_lg_u32 {s(S_W)}, 0\ns_cbranch_scc1 {lab}")
    arrive(A)
    A.label(lab)

def row_stats(A):
    A("v_mov_b32 v8, 0\nv_mov_b32 v9, 0")
    for i in range(5):
        A(f"v_dot2c_f32_bf16 v8, {s(S_ONES)}, {v(V_ROW + i)}")
        A(f"v_dot2c_f32_bf16 v9, {v(V_ROW + i)}, {v(V_ROW + i)}")
    A("s_nop 2")
    for sh in (8, 4, 2, 1):
        A(f"v_add_f32_dpp v8, v8, v8 row_ror:{sh} row_mask:0xf bank_mask:0xf")
        A(f"v_add_f32_dpp v9, v9, v9 row_ror:{sh} row_mask:0xf bank_mask:0xf")
        A("s_nop 0")
    for op in ("v_permlane16_swap_b32", "v_permlane32_swap_b32"):
        A(f"""
        v_mov_b32 v10, v8
        v_mov_b32 v11, v9
        s_nop 1
        {op} v8, v10
        {op} v9, v11
        s_nop 1
        v_add_f32 v8, v8, v10
        v_add_f32 v9, v9, v11
        """)
    A(f"""
    s_mov_b32 s34, 0x3acccccd
    s_mov_b32 s35, 0x3727c5ac
    v_mul_f32 v8, s34, v8
    v_mul_f32 v9, s34, v9
    v_fma_f32 v9, -v8, v8, v9
    v_max_f32 v9, 0, v9
    v_cvt_pk_bf16_f32 v10, v8, v9
    v_lshlrev_b32 v8, 16, v10
    v_and_b32 v9, 0xffff0000, v10
    v_add_f32 v9, s35, v9
    v_cvt_pk_bf16_f32 v10, v9, v9
    v_lshlrev_b32 v10, 16, v10
    v_sqrt_f32 v10, v10
    s_nop 0
    v_cvt_pk_bf16_f32 v10, v10, v10
    v_lshlrev_b32 v10, 16, v10
    v_rcp_f32 v9, v10
    s_lshl_b32 s32, s2, 3
    s_add_u32 s32, s32, {s(S_W)}
    s_lshl_b32 s32, s32, 3
    s_add_u32 s32, s32, {STAT}
    v_mov_b32 v6, 0
    ;[
    s_mov_b64 exec, 1
    buffer_store_dwordx2 v[8:9], v6, s[12:15], s32 offen sc1
    s_mov_b64 exec, -1
    ;]
    """)

FW_HI = (1 << (NK - 64)) - 1

def fw_issue(A, reg):
    A(f"""
    v_lshlrev_b32 v6, 7, {v(V_L)}
    v_add_u32 v6, {FW}, v6
    buffer_load_dword {v(reg)}, v6, s[12:15], 0 offen sc1
    v_add_u32 v6, {64 * 128}, v6
    s_mov_b64 exec, {FW_HI}
    buffer_load_dword {v(reg + 1)}, v6, s[12:15], 0 offen sc1
    s_mov_b64 exec, -1
    """)
def fw_cond(A, reg):
    A(f"""
    v_cmp_ne_u32 s[68:69], 0, {v(reg)}
    v_cmp_ne_u32 s[34:35], 0, {v(reg + 1)}
    s_nop 1
    s_and_b32 s34, s34, {FW_HI}
    s_cmp_eq_u64 s[68:69], -1
    s_cselect_b32 s34, s34, 0
    s_cmp_eq_u32 s34, {FW_HI}
    """)
def cnt_issue(A, reg):
    A(f"v_lshlrev_b32 v6, 6, {v(V_L)}\nbuffer_load_dword {v(reg)}, v6, s[16:19], 0 offen sc1")
def cnt_cond(A, reg):
    A(f"""
    v_cmp_le_u32 s[68:69], {0 if NOCOUNT else 256 // NCNT}, {v(reg)}
    s_nop 1
    s_and_b32 s34, s68, {(1 << NCNT) - 1}
    s_cmp_eq_u32 s34, {(1 << NCNT) - 1}
    """)

def check(slow, name, cond, issue):
    def inline(B):
        cond(B); B(f"s_cbranch_scc0 {name}_slow"); B.label(name + "_ok")
    def outl(B):
        B.label(name + "_slow")
        B("s_mov_b32 s71, 0"); B.label(name + "_spin")
        issue(B); B("s_waitcnt vmcnt(0)")
        cond(B)
        B(f"s_cbranch_scc1 {name}_ok\ns_add_u32 s71, s71, 1\ns_cmp_lt_u32 s71, 0x100000\ns_cbranch_scc1 {name}_spin\ns_branch {name}_ok")
    slow.append(outl)
    return inline

def wdf_base(A, dst, wsreg):
    A(f"""
    s_mul_i32 s34, {wsreg}, 14
    s_cmp_eq_u32 {wsreg}, 3
    s_cselect_b32 s35, 1, 0
    s_sub_u32 s34, s34, s35
    s_mul_i32 s35, {s(S_N)}, {NK}
    s_add_u32 s34, s34, s35
    s_mul_i32 {dst}, s34, 5120
    s_add_u32 {dst}, {dst}, {WDF}
    """)

def epi_loads(A):
    L = V_L
    A(f"""
    v_and_b32 v6, 31, {v(L)}
    s_lshl_b32 s34, {s(S_RB)}, 7
    s_lshl_b32 s35, {s(S_SH)}, 6
    s_add_u32 s34, s34, s35
    v_add_u32 v7, s34, v6
    v_lshlrev_b32 v7, 3, v7
    v_add_u32 v7, {STAT}, v7
    v_lshlrev_b32 v6, 4, v6
    v_lshrrev_b32 v10, 5, {v(L)}
    v_lshl_add_u32 v6, v10, 11, v6
    s_mul_i32 s34, {s(S_CIDX)}, 40
    s_lshr_b32 s35, {s(S_W)}, 1
    s_add_u32 s34, s34, s35
    s_lshl_b32 s34, s34, 9
    s_add_u32 s34, s34, {CSP}
    buffer_load_dwordx2 v[2:3], v7, s[12:15], 0 offen sc1
    buffer_load_dwordx2 v[4:5], v7, s[12:15], 0 offen offset:256 sc1
    """)
    for i in range(5):
        A(f"buffer_load_dwordx4 {v(V_ROW + 4 * i, 4)}, v6, s[12:15], s34 offen sc1")
        if i < 4: A("s_add_u32 s34, s34, 4096")

def setup_main(A):
    L = V_L
    A(f"""
    s_mov_b32 {s(S_TYPE)}, 0
    s_mov_b32 s33, 0
    s_cmp_ge_u32 {s(S_CIDX)}, 9
    s_cselect_b32 {s(S_TYPE)}, 1, {s(S_TYPE)}
    s_cselect_b32 s33, 9, s33
    s_cmp_ge_u32 {s(S_CIDX)}, 11
    s_cselect_b32 {s(S_TYPE)}, 2, {s(S_TYPE)}
    s_cselect_b32 s33, 11, s33
    s_sub_u32 {s(S_C)}, {s(S_CIDX)}, s33
    s_lshr_b32 s32, {s(S_W)}, 2
    s_and_b32 {s(S_SH)}, {s(S_W)}, 1
    s_mov_b32 s8, s36
    s_mov_b32 s9, s37
    s_mov_b32 s10, {X_BYTES}
    s_mov_b32 s11, 0x20000
    """)
    row_loads(A)
    A(f"""
    s_lshr_b32 s32, {s(S_W)}, 2
    s_mul_i32 s70, {s(S_RB)}, {128 * 1280}
    s_mul_i32 s34, {s(S_P)}, 640
    s_add_u32 s70, s70, s34
    s_lshl_b32 {s(S_XDST)}, {s(S_W)}, 11
    s_add_u32 {s(S_XDST)}, {s(S_XDST)}, {XBASE}
    """)
    A(f"""
    v_lshrrev_b32 v2, 3, {v(L)}
    s_lshl_b32 s34, {s(S_W)}, 4
    v_add_u32 v2, s34, v2
    v_mul_u32_u24 v3, 1280, v2
    v_lshrrev_b32 v4, 4, {v(L)}
    v_xor_b32 v4, v4, {v(L)}
    v_and_b32 v4, 7, v4
    v_lshl_add_u32 {v(V_DX)}, v4, 4, v3
    v_xor_b32 v4, 4, v4
    v_lshl_add_u32 v4, v4, 4, v3
    v_add_u32 {v(V_DX + 1)}, {8 * 1280}, v4
    """)
    def xdma(g, half):
        A(f"s_add_u32 {s(S_T)}, {s(S_XDST)}, {g * XSLOT + half * 1024}\ns_mov_b32 m0, {s(S_T)}\ns_add_u32 {s(S_T)}, s70, {g * 128}")
        A(f"buffer_load_dwordx4 {v(V_DX + half)}, {s(8, 4)}, {s(S_T)} offen lds")
    xdma(0, 0); xdma(0, 1)
    A(f"""
    s_add_u32 {s(S_XD)}, s70, {2 * 128}
    s_cmp_eq_u32 {s(S_TYPE)}, 0
    s_cbranch_scc0 L_setup_qkv
    s_cmp_eq_u32 s32, 0
    s_cselect_b32 s4, s40, s42
    s_cselect_b32 s5, s41, s43
    s_mov_b32 s6, {WG_BYTES}
    s_mov_b32 s33, 3456
    s_mul_i32 {s(S_WSO)}, {s(S_C)}, 384
    s_mov_b32 s68, 24
    s_mov_b32 s69, 3
    s_branch L_setup_done
    L_setup_qkv:
    s_mov_b32 s4, s38
    s_mov_b32 s5, s39
    s_mov_b32 s6, {WQKV_BYTES}
    s_mov_b32 s33, 3840
    s_mov_b32 s68, 20
    s_mov_b32 s69, 2
    s_cmp_eq_u32 {s(S_TYPE)}, 1
    s_cbranch_scc0 L_setup_kv
    s_mul_i32 {s(S_WSO)}, {s(S_C)}, 640
    s_mul_i32 s34, s32, 320
    s_add_u32 {s(S_WSO)}, {s(S_WSO)}, s34
    s_branch L_setup_done
    L_setup_kv:
    s_mul_i32 {s(S_WSO)}, {s(S_C)}, 320
    s_mul_i32 s34, s32, 1280
    s_add_u32 {s(S_WSO)}, {s(S_WSO)}, s34
    s_add_u32 {s(S_WSO)}, {s(S_WSO)}, 1280
    L_setup_done:
    s_mov_b32 s7, 0x20000
    s_mov_b32 s71, {s(S_WSO)}
    s_lshl_b32 {s(S_WSTEP)}, s33, 5
    s_and_b32 s34, {s(S_W)}, 3
    s_lshl_b32 s35, s34, 3
    s_mul_i32 s35, s35, s33
    s_add_u32 {s(S_WSO)}, {s(S_WSO)}, s35
    s_mul_i32 s35, {s(S_WSTEP)}, 10
    s_mul_i32 s35, s35, {s(S_P)}
    s_add_u32 {s(S_WSO)}, {s(S_WSO)}, s35
    s_mul_i32 {s(S_WDST)}, s32, {SEGB}
    s_mul_i32 s34, s34, 3072
    s_add_u32 {s(S_WDST)}, {s(S_WDST)}, s34
    s_mov_b32 s35, -24
    """)
    for j in range(3):
        A(f"""
        v_add_u32 v2, {64 * j}, {v(L)}
        v_mul_u32_u24 v3, 2731, v2
        v_lshrrev_b32 v3, 16, v3
        v_mad_i32_i24 v4, v3, s35, v2
        v_and_b32 v5, 3, v3
        v_lshlrev_b32 v5, 1, v5
        v_xor_b32 v4, v5, v4
        v_lshlrev_b32 v5, 4, v4
        v_mad_u32_u24 v5, v3, s33, v5
        v_subrev_u32 v5, {1024 * j}, v5
        v_cmp_gt_u32 vcc, s68, v4
        v_mov_b32 v6, 0x40000000
        s_nop 0
        v_cndmask_b32 {v(V_DW + j)}, v6, v5, vcc
        """)
    def wdma(slot):
        A(f"s_add_u32 {s(S_T)}, {s(S_WDST)}, {slot * WSLOT}\ns_mov_b32 m0, {s(S_T)}\ns_nop 0")
        for j in range(3):
            A(f"buffer_load_dwordx4 {v(V_DW + j)}, {s(4, 4)}, {s(S_WSO)} offen offset:{1024 * j} lds")
        A(f"s_add_u32 {s(S_WSO)}, {s(S_WSO)}, {s(S_WSTEP)}")
    wdma(0)
    A(f"""
    s_lshr_b32 s34, {s(S_W)}, 1
    s_and_b32 s34, s34, 1
    s_cmp_eq_u32 s32, 0
    s_cselect_b32 s35, 3, s69
    s_mov_b32 {s(S_B)}, s35
    s_mul_i32 s34, s34, s35
    s_cselect_b32 s35, 0, 6
    s_add_u32 {s(S_TB)}, s34, s35
    s_and_b32 {s(S_DUTY)}, {s(S_RB)}, 7
    s_cmp_eq_u32 {s(S_SH)}, s32
    s_cselect_b32 {s(S_DUTY)}, {s(S_DUTY)}, 30
    s_cmp_gt_u32 {s(S_DUTY)}, 4
    s_cselect_b32 {s(S_DUTY)}, 30, {s(S_DUTY)}
    s_mov_b32 {s(S_ONES)}, 0x3f803f80
    """)
    A(f"v_lshlrev_b32 v6, 2, {v(L)}\nv_add_u32 v6, {LFL}, v6\nv_mov_b32 v7, 0\nds_write_b32 v6, v7")
    if TOUCH:
        A(f"""
        s_and_b32 s34, {s(S_RB)}, 7
        s_lshl_b32 s34, s34, 2
        s_and_b32 s35, {s(S_W)}, 3
        s_add_u32 s34, s34, s35
        s_mul_i32 s34, s34, 20
        v_mul_u32_u24 v2, 21846, {v(L)}
        v_lshrrev_b32 v2, 16, v2
        v_mul_u32_u24 v3, 3, v2
        v_sub_u32 v3, {v(L)}, v3
        v_add_u32 v2, s34, v2
        v_mul_lo_u32 v2, v2, s33
        v_lshl_add_u32 v2, v3, 7, v2
        v_add_u32 {v(V_TW)}, s71, v2
        s_lshr_b32 s34, s2, 6
        s_lshl_b32 s34, s34, 3
        s_add_u32 s34, s34, {s(S_W)}
        s_lshl_b32 s34, s34, 2
        s_lshl_b32 s35, {s(S_RB)}, 7
        s_add_u32 s34, s34, s35
        v_mul_u32_u24 v2, 6554, {v(L)}
        v_lshrrev_b32 v2, 16, v2
        v_mul_u32_u24 v3, 10, v2
        v_sub_u32 v3, {v(L)}, v3
        v_add_u32 v2, s34, v2
        v_mul_u32_u24 v2, 1280, v2
        v_lshl_add_u32 {v(V_TX)}, v3, 7, v2
        """)
    zero_words(A, False)
    wdma(1); xdma(1, 0); xdma(1, 1); wdma(2); wdma(3); xdma(2, 0)
    if TOUCH:
        A(f"""
        buffer_load_dword {v(V_TW)}, {v(V_TW)}, s[4:7], 0 offen
        buffer_load_dword {v(V_TX)}, {v(V_TX)}, s[8:11], 0 offen
        """)
    Prof.stamp(A, 11)
    A(f"""
    v_lshrrev_b32 v2, 4, {v(L)}
    v_and_b32 v3, 1, v2
    v_lshrrev_b32 v2, 1, v2
    v_bfe_u32 v4, {v(L)}, 2, 2
    v_lshl_add_u32 v5, v2, 3, v4
    v_mul_u32_u24 v5, 384, v5
    v_mul_u32_u24 v3, {SEGB}, v3
    v_add_u32 v5, v5, v3
    v_and_b32 v6, 1, {v(L)}
    v_bfe_u32 v7, {v(L)}, 1, 1
    v_lshl_add_u32 v5, v7, 3, v5
    v_lshlrev_b32 v4, 1, v4
    """)
    for t in range(3):
        A(f"""
        s_add_u32 s34, {s(S_TB)}, {t}
        s_lshl_b32 s34, s34, 1
        v_add_u32 v8, s34, v6
        v_xor_b32 v8, v8, v4
        v_lshl_add_u32 {v(V_WR + t)}, v8, 4, v5
        """)
    A(f"""
    v_and_b32 v2, 31, {v(L)}
    s_lshl_b32 s34, {s(S_SH)}, 6
    v_add_u32 v3, s34, v2
    v_lshlrev_b32 v3, 7, v3
    v_add_u32 v3, {XBASE}, v3
    v_bfe_u32 v4, {v(L)}, 1, 3
    v_lshrrev_b32 v5, 5, {v(L)}
    """)
    for k in range(4):
        A(f"""
        v_add_u32 v6, {2 * k}, v5
        v_xor_b32 v6, v6, v4
        v_lshl_add_u32 {v(V_XR + k)}, v6, 4, v3
        """)
    for r in range(V_ACC, V_ACC + 96):
        A(f"v_mov_b32 {v(r)}, 0")
    for t in range(3):
        A(f"v_mov_b32 {v(V_CS + t)}, 0")
    for t in range(3):
        A(f"v_add_u32 {v(V_WR2 + t)}, {2 * WSLOT}, {v(V_WR + t)}")
    A(f"""
    v_lshlrev_b32 {v(V_L16)}, 4, {v(L)}
    s_mov_b32 {s(S_XSTEP)}, 128
    s_mul_i32 {s(S_XWRAP)}, {s(S_P)}, 1280
    s_mul_i32 {s(S_WWRAP)}, {s(S_WSTEP)}, 20
    s_mul_i32 {s(S_WWRAP)}, {s(S_WWRAP)}, {s(S_P)}
    s_and_b32 s33, {s(S_W)}, 3
    """)
    wdf_base(A, s(S_WSO2), "s33")
    A(f"""
    s_lshr_b32 s34, {s(S_W)}, 2
    s_mul_i32 s34, s34, 3072
    s_add_u32 {s(S_WSO2)}, {s(S_WSO2)}, s34
    s_lshr_b32 s33, {s(S_W)}, 1
    """)
    wdf_base(A, s(S_XD2), "s33")
    A(f"""
    s_and_b32 s34, {s(S_W)}, 1
    s_lshl_b32 s34, s34, 11
    s_add_u32 {s(S_XD2)}, {s(S_XD2)}, s34
    s_add_u32 {s(S_XD2)}, {s(S_XD2)}, {24 * 1024}
    s_waitcnt vmcnt({12 + NT}) lgkmcnt(0)
    s_barrier
    """)
    Prof.stamp(A, 2); Prof.stamp(A, 8, real=True)

def first_reads(A, b):
    for txt, regs in reads_for(b, 0, 0, 0):
        A(txt)

V_CSV = 16
V_TMP = 48
LOG2E = 0x3fb8aa3b
EPS6 = 0x358637bd
import struct
def f32(x): return struct.unpack('<I', struct.pack('<f', x))[0]
EPS6L = f32(1e-6 * 1.4426950408889634)
LN2 = f32(0.6931471805599453)

V_CA = 64; V_CB = 76
def center_prep(b, slow):
    G = []
    def cond(B):
        regs = [V_ROW + 4 * i + t for i in range(5) for t in range(b)]
        B(f"v_min3_u32 v6, {v(regs[0])}, {v(regs[1])}, {v(regs[2])}")
        rest = regs[3:]
        while rest:
            if len(rest) >= 2:
                B(f"v_min3_u32 v6, v6, {v(rest[0])}, {v(rest[1])}"); rest = rest[2:]
            else:
                B(f"v_min_u32 v6, v6, {v(rest[0])}"); rest = rest[1:]
        B("v_cmp_eq_u32 vcc, 0, v6\ns_nop 4\ns_cmp_eq_u64 vcc, 0")
    B = Asm(); check(slow, f"L_ev{b}", cond, epi_loads)(B); G.append("\n".join(B.lines))
    for i in range(1, 5):
        for t in range(b):
            G.append(f"v_add_f32 {v(V_ROW + t)}, {v(V_ROW + t)}, {v(V_ROW + 4 * i + t)}")
    for T in range(2):
        for r in range(4):
            G.append(f"v_mov_b32 {v(V_CB + 4 * T + r)}, 0")
    G.append("\n".join([f"v_mov_b32 {v(V_ROW + 4 + t)}, {v(V_ROW + t)}" for t in range(b)] + ["s_nop 1"] +
                       [f"v_permlane32_swap_b32 {v(V_ROW + t)}, {v(V_ROW + 4 + t)}" for t in range(b)] +
                       ["v_xor_b32 v2, 0x80000000, v2", "v_xor_b32 v4, 0x80000000, v4"] +
                       [f"v_add_f32 {v(V_ROW + t)}, {v(V_ROW + t)}, {v(V_ROW + 4 + t)}" for t in range(b)]))
    x = ["s_mov_b32 s34, 0x07060302", "s_mov_b64 exec, 0xffffffff"]
    for T in range(2):
        x.append(f"v_perm_b32 {v(V_CB + 4 * T)}, {v(2 + 2 * T)}, {v(2 + 2 * T)}, s34")
        x.append(f"v_lshrrev_b32 {v(V_CB + 4 * T + 1)}, 16, {v(2 + 2 * T)}")
    x.append("s_mov_b64 exec, -1")
    G.append("\n".join(x))
    for t in range(b):
        c, r1, r2 = V_ROW + t, V_ROW + 4 + t, V_ROW + 8 + t
        G.append(f"v_and_b32 {v(r1)}, 0xffff0000, {v(c)}")
        G.append(f"v_sub_f32 {v(r1)}, {v(c)}, {v(r1)}")
        G.append(f"v_and_b32 {v(r2)}, 0xffff0000, {v(r1)}")
        G.append(f"s_mov_b32 s34, 0x07060302\nv_perm_b32 {v(V_CA + 4 * t)}, {v(r1)}, {v(c)}, s34")
        G.append(f"v_sub_f32 {v(r2)}, {v(r1)}, {v(r2)}")
        G.append(f"v_mov_b32 {v(V_CA + 4 * t + 2)}, 0")
        G.append(f"v_mov_b32 {v(V_CA + 4 * t + 3)}, 0")
        G.append(f"v_cvt_pk_bf16_f32 {v(V_CA + 4 * t + 1)}, {v(r2)}, 0")
    return G

def epi_common(A, b, slow):
    Prof.stamp(A, 3); Prof.stamp(A, 9, real=True)
    estamp(A, 24)
    estamp(A, 25)
    for t in range(b):
        for T in range(2):
            A(f"v_mfma_f32_32x32x16_bf16 {v(acc(T, t), 16)}, {v(V_CA + 4 * t, 4)}, {v(V_CB + 4 * T, 4)}, {v(acc(T, t), 16)}")
    Prof.stamp(A, 4)
    estamp(A, 26)

V_EA = 96
def a_early_loads(A, base, base4, addr):
    for st in range(3):
        for nt in range(5):
            d = v(V_EA + 20 * st + 4 * nt, 4)
            if nt < 4: A(f"buffer_load_dwordx4 {d}, {addr}, s[12:15], {base} offen offset:{1024 * nt}")
            else: A(f"buffer_load_dwordx4 {d}, {addr}, s[12:15], {base4} offen")
        if st < 2: A(f"s_add_u32 {base}, {base}, 5120\ns_add_u32 {base4}, {base4}, 5120")

def epi_gu(A):
    L = V_L
    A("v_mul_f32 v6, v3, v3\nv_mul_f32 v8, v5, v5")
    A(f"""
    v_bfe_u32 v12, {v(L)}, 4, 1
    v_lshlrev_b32 v12, 10, v12
    v_lshrrev_b32 v13, 5, {v(L)}
    v_lshl_add_u32 v12, v13, 8, v12
    v_and_b32 v13, 15, {v(L)}
    v_lshl_add_u32 v12, v13, 4, v12
    s_lshl_b32 s55, {s(S_RB)}, 1
    s_add_u32 s55, s55, {s(S_SH)}
    s_mul_i32 s55, s55, 54
    s_mul_i32 s56, {s(S_C)}, 12
    s_add_u32 s56, s56, {s(S_TB)}
    """)
    A("s_nop 3")
    for t in range(3):
        A(f"""
        s_add_u32 s57, s56, {t}
        s_lshr_b32 s33, s57, 1
        s_add_u32 s33, s33, s55
        s_lshl_b32 s33, s33, 12
        s_and_b32 s57, s57, 1
        s_lshl_b32 s57, s57, 9
        s_add_u32 s33, s33, s57
        """)
        for T in range(2):
            r = acc(T, t)
            rs = 6 + 2 * T
            for q in range(8):
                A(f"v_mul_f32 {v(r + q)}, {v(r + q)}, {v(r + 8 + q)}")
            for q in range(8):
                A(f"v_mul_f32 {v(r + q)}, {v(r + q)}, {v(rs)}")
            for q in range(4):
                A(f"v_cvt_pk_bf16_f32 {v(r + 8 + q)}, {v(r + 2 * q)}, {v(r + 2 * q + 1)}")
            A(f"buffer_store_dwordx4 {v(r + 8, 4)}, v12, s[12:15], s33 offen offset:{2048 * T}{ST}")
        estamp(A, 27 + t)

def phi8(A, r, T, n, tmp):
    rl = 6 + 2 * T
    for q in range(n):
        A(f"v_fma_f32 {v(r + q)}, {v(r + q)}, {v(rl)}, v14")
    for q in range(n):
        A(f"v_exp_f32 {v(tmp + q)}, {v(r + q)} clamp")
    for q in range(n):
        A(f"v_max_f32 {v(r + q)}, {v(r + q)}, v14")
    for q in range(n):
        A(f"v_fmac_f32 {v(tmp + q)}, s68, {v(r + q)}")

def phi_consts(A):
    A(f"""
    v_mul_f32 v6, {hex(LOG2E)}, v3
    v_mul_f32 v8, {hex(LOG2E)}, v5
    v_mov_b32 v14, {hex(EPS6L)}
    s_mov_b32 s68, {hex(LN2)}
    """)

def epi_q(A, b):
    L = V_L
    phi_consts(A)
    A(f"""
    v_bfe_u32 v12, {v(L)}, 4, 1
    v_lshlrev_b32 v12, 10, v12
    v_lshrrev_b32 v13, 5, {v(L)}
    v_lshl_add_u32 v12, v13, 8, v12
    v_and_b32 v13, 15, {v(L)}
    v_lshl_add_u32 v12, v13, 4, v12
    s_lshl_b32 s55, {s(S_RB)}, 1
    s_add_u32 s55, s55, {s(S_SH)}
    s_mul_i32 s55, s55, 20
    s_mul_i32 s56, {s(S_C)}, 10
    s_add_u32 s55, s55, s56
    s_lshl_b32 s55, s55, 12
    s_add_u32 s55, s55, {PQF}
    """)
    for t in range(b):
        A(f"""
        s_add_u32 s57, {s(S_TB)}, {t}
        s_lshr_b32 s33, s57, 1
        s_lshl_b32 s33, s33, 12
        s_and_b32 s57, s57, 1
        s_lshl_b32 s57, s57, 9
        s_add_u32 s33, s33, s57
        s_add_u32 s33, s33, s55
        s_add_u32 s56, s33, {5 * 4096}
        """)
        for T in range(2):
            r = acc(T, t)
            phi8(A, r, T, 16, V_TMP)
            for q in range(8):
                A(f"v_cvt_pk_bf16_f32 {v(r + q)}, {v(V_TMP + 2 * q)}, {v(V_TMP + 2 * q + 1)}")
            A(f"buffer_store_dwordx4 {v(r, 4)}, v12, s[12:15], s33 offen offset:{2048 * T}{ST}")
            A(f"buffer_store_dwordx4 {v(r + 4, 4)}, v12, s[12:15], s56 offen offset:{2048 * T}{ST}")
        estamp(A, 27 + t)

KVS = XBASE
KVP_ROW = 336; KVV = 64 * KVP_ROW
def epi_kv(A, b):
    L = V_L
    F0, F1R, ONES = 16, 56, 88
    D1, D2 = 160, 176
    phi_consts(A)
    A(f"""
    v_and_b32 v12, 31, {v(L)}
    s_lshl_b32 s55, {s(S_SH)}, 5
    v_add_u32 v12, s55, v12
    v_mul_u32_u24 v12, {KVP_ROW}, v12
    v_lshrrev_b32 v13, 5, {v(L)}
    v_lshl_add_u32 v12, v13, 4, v12
    s_lshl_b32 s55, {s(S_TB)}, 5
    s_add_u32 s55, s55, {KVS}
    v_add_u32 v12, s55, v12
    v_lshrrev_b32 v9, 5, {v(L)}
    v_bfe_u32 v10, {v(L)}, 2, 2
    v_lshl_add_u32 v9, v10, 2, v9
    v_mul_u32_u24 v9, {KVP_ROW}, v9
    v_bfe_u32 v10, {v(L)}, 4, 1
    v_lshl_add_u32 v9, v10, 5, v9
    v_and_b32 v10, 3, {v(L)}
    v_lshl_add_u32 v9, v10, 3, v9
    s_mul_i32 s55, {s(S_W)}, 40
    s_add_u32 s55, s55, {KVS}
    v_add_u32 v9, s55, v9
    """)
    for r in range(4): A(f"v_mov_b32 {v(ONES + r)}, {s(S_ONES)}")
    def valu(T, t):
        r = acc(T, t)
        phi8(A, r, T, 8, V_TMP)
        rsp = 2 + 2 * T
        for q in range(8):
            A(f"v_mul_f32 {v(r + 8 + q)}, {v(r + 8 + q)}, {v(rsp + 1)}")
        for q in range(4):
            A(f"v_cvt_pk_bf16_f32 {v(r + q)}, {v(V_TMP + 2 * q)}, {v(V_TMP + 2 * q + 1)}")
        for q in range(4):
            A(f"v_cvt_pk_bf16_f32 {v(r + 4 + q)}, {v(r + 8 + 2 * q)}, {v(r + 8 + 2 * q + 1)}")
    def writes(T, t):
        r = acc(T, t)
        A(f"ds_write_b128 v12, {v(r, 4)} offset:{32 * t}")
        A(f"ds_write_b128 v12, {v(r + 4, 4)} offset:{KVV + 32 * t}")
    def reads(F):
        for st in range(4):
            for p in range(2):
                A(f"ds_read_b64_tr_b16 {v(F + 8 * st + 2 * p, 2)}, v9 offset:{(16 * st + 2 * p) * KVP_ROW}")
            for p in range(2):
                A(f"ds_read_b64_tr_b16 {v(F + 8 * st + 4 + 2 * p, 2)}, v9 offset:{KVV + (16 * st + 2 * p) * KVP_ROW}")
    def mfmas(F, first, waits):
        for st in range(4):
            if waits: A(f"s_waitcnt lgkmcnt({4 * (3 - st)})")
            for D, Bop in ((D1, F + 8 * st + 4), (D2, ONES)):
                c = "0" if (first and st == 0) else v(D, 16)
                A(f"v_mfma_f32_32x32x16_bf16 {v(D, 16)}, {v(F + 8 * st, 4)}, {v(Bop, 4)}, {c}")
    for t in range(b):
        valu(0, t); writes(0, t)
        estamp(A, 27 + t)
    A("s_waitcnt lgkmcnt(0)\ns_barrier")
    reads(F0)
    for t in range(b):
        valu(1, t)
        if t == 0:
            A("s_waitcnt lgkmcnt(0)")
            mfmas(F0, True, False)
    estamp(A, 30)
    A("s_barrier")
    for t in range(b): writes(1, t)
    A("s_waitcnt lgkmcnt(0)\ns_barrier")
    estamp(A, 31)
    reads(F1R)
    A(f"""
    v_and_b32 v8, 31, {v(L)}
    v_lshrrev_b32 v13, 5, {v(L)}
    v_mul_u32_u24 v10, 80, v8
    s_lshl_b32 s55, {s(S_C)}, 3
    s_add_u32 s55, s55, {s(S_W)}
    s_lshl_b32 s55, s55, 4
    s_add_u32 s55, s55, {s(S_RB)}
    s_mul_i32 s55, s55, {KVP_BLK}
    s_add_u32 s55, s55, {KVP}
    v_cmp_eq_u32 vcc, 20, v8
    v_lshl_add_u32 v10, v13, 4, v10
    """)
    mfmas(F1R, False, True)
    estamp(A, 32)
    A("s_nop 7\ns_nop 3")
    for r in range(12):
        A(f"v_cndmask_b32 {v(D1 + r)}, {v(D1 + r)}, {v(D2 + r)}, vcc")
    for r in (0, 4, 8):
        A(f"v_or_b32 {v(D1 + r)}, 1, {v(D1 + r)}")
    A(f"""
    v_cmp_ge_u32 vcc, 20, v8
    s_and_saveexec_b64 s[56:57], vcc
    buffer_store_dwordx4 {v(D1, 4)}, v10, s[12:15], s55 offen{ST}
    buffer_store_dwordx4 {v(D1 + 4, 4)}, v10, s[12:15], s55 offen offset:32{ST}
    v_cmp_eq_u32 vcc, 0, v13
    s_and_b64 exec, exec, vcc
    buffer_store_dwordx4 {v(D1 + 8, 4)}, v10, s[12:15], s55 offen offset:64{ST}
    s_mov_b64 exec, s[56:57]
    """)
    estamp(A, 33)
    A("s_waitcnt vmcnt(3)")
    estamp(A, 34)
    A("s_barrier")
    estamp(A, 35)

def post_f1(A):
    lab = A.uid("L_f1")
    estamp(A, 33)
    flag_addr(A)
    A("s_waitcnt vmcnt(0) lgkmcnt(0)")
    estamp(A, 34)
    A("s_barrier")
    estamp(A, 35)
    A(f"""
    s_cmp_lg_u32 {s(S_W)}, 0
    s_cbranch_scc1 {lab}
    v_mov_b32 v7, 1
    s_mov_b64 exec, 0xffffffff
    buffer_store_dword v7, {v(V_FA)}, s[12:15], 0 offen sc1
    s_mov_b64 exec, -1
    {lab}:
    """)

V_FA = 15
def flag_addr(A):
    L = V_L
    A(f"""
    s_lshl_b32 s34, {s(S_CIDX)}, 1
    s_min_u32 s32, s34, 14
    s_max_u32 s33, s34, 2
    s_sub_u32 s33, s33, 2
    s_sub_u32 s35, s34, 1
    s_bitcmp1_b32 {s(S_CIDX)}, 0
    s_cselect_b32 s32, s35, s32
    s_cselect_b32 s33, s35, s33
    s_sub_u32 s35, {s(S_CIDX)}, 9
    s_lshl_b32 s35, s35, 3
    s_add_u32 s35, s35, 3
    s_add_u32 s34, s35, 4
    s_cmp_ge_u32 {s(S_CIDX)}, 9
    s_cselect_b32 s32, s35, s32
    s_cselect_b32 s33, s34, s33
    s_lshl_b32 s32, s32, 2
    s_lshl_b32 s33, s33, 2
    s_lshl_b32 s34, {s(S_RB)}, 1
    v_and_b32 v16, 1, {v(L)}
    v_add_u32 v16, s34, v16
    v_lshrrev_b32 v17, 2, v16
    v_and_b32 v16, 3, v16
    v_lshl_add_u32 v17, v16, 3, v17
    v_bfe_u32 v16, {v(L)}, 1, 3
    v_lshl_add_u32 v17, v16, 5, v17
    v_lshlrev_b32 v17, 7, v17
    v_mov_b32 v16, s32
    v_mov_b32 v18, s33
    v_cmp_gt_u32 vcc, 16, {v(L)}
    s_nop 1
    v_cndmask_b32 v16, v18, v16, vcc
    v_add_u32 v17, v17, v16
    v_add_u32 {v(V_FA)}, {INB}, v17
    """)

def kappa_of(A, dst, n):
    A(f"""
    s_mov_b32 {dst}, {n}
    s_cmp_ge_u32 {n}, 7
    s_cselect_b32 s35, 7, 0
    s_add_u32 {dst}, {dst}, s35
    s_cmp_ge_u32 {n}, 14
    s_cselect_b32 s35, 7, 0
    s_add_u32 {dst}, {dst}, s35
    s_cmp_ge_u32 {n}, 21
    s_cselect_b32 s35, 6, 0
    s_add_u32 {dst}, {dst}, s35
    s_sub_u32 s35, {n}, 21
    s_cmp_ge_u32 {n}, 28
    s_cselect_b32 {dst}, s35, {dst}
    s_cmp_ge_u32 {n}, 35
    s_cselect_b32 s35, 7, 0
    s_add_u32 {dst}, {dst}, s35
    s_cmp_ge_u32 {n}, 42
    s_cselect_b32 s35, 7, 0
    s_add_u32 {dst}, {dst}, s35
    s_cmp_ge_u32 {n}, 48
    s_cselect_b32 s35, 7, 0
    s_add_u32 {dst}, {dst}, s35
    """)

def side(A):
    L = V_L
    K = [24, 25, 26, 27, 28]
    NJ = 5
    A(f"""
    s_mov_b32 s8, s36
    s_mov_b32 s9, s37
    s_mov_b32 s10, {X_BYTES}
    s_mov_b32 s11, 0x20000
    s_mov_b32 s4, s62
    s_mov_b32 s5, s63
    s_mov_b32 s6, {WD_BYTES}
    s_mov_b32 s7, 0x20000
    s_mov_b32 {s(S_ONES)}, 0x3f803f80
    s_mov_b32 {s(S_TYPE)}, 3
    """)
    row_loads(A)
    for i in range(NJ):
        A(f"s_add_u32 s33, {s(S_RB)}, {16 * i}")
        if i < 4: kappa_of(A, s(K[i]), "s33")
        if i >= 3:
            A(f"s_cmp_ge_u32 s33, 54\ns_cselect_b32 {s(K[i])}, s33, {s(K[i])}\ns_cmp_ge_u32 s33, {NK}\ns_cselect_b32 {s(K[i])}, 79, {s(K[i])}")
    zero_words(A, True)
    A(f"""
    s_sub_u32 s34, {s(S_W)}, 1
    s_cmp_gt_u32 s34, 2
    s_cbranch_scc1 L_side_nzz
    s_lshl_b32 s34, s34, 10
    s_mul_i32 s33, {s(S_RB)}, {2 * KVF_HEAD}
    s_add_u32 s33, s33, s34
    s_add_u32 s33, s33, {KVF}
    v_lshlrev_b32 v6, 4, {v(L)}
    v_add_u32 v7, 1, {v(L)}
    v_and_b32 v7, 2, v7
    v_cmp_ne_u32 vcc, 0, v7
    v_mov_b32 v18, -1
    v_mov_b32 v19, -1
    v_cndmask_b32 v16, 0, -1, vcc
    v_cndmask_b32 v17, 0, -1, vcc
    buffer_store_dwordx4 v[16:19], v6, s[12:15], s33 offen sc1
    L_side_nzz:
    """)
    A(f"v_mov_b32 v6, {s(K[0])}")
    for i in range(1, NJ): A(f"v_writelane_b32 v6, {s(K[i])}, {i}")
    A(f"""
    v_lshlrev_b32 v6, 7, v6
    v_add_u32 v30, {FW}, v6
    v_mov_b32 v8, 0
    s_cmp_lg_u32 {s(S_W)}, 0
    s_cbranch_scc1 L_side_nz
    s_mov_b64 exec, {(1 << NJ) - 1}
    buffer_store_dword v8, v30, s[12:15], 0 offen sc1
    s_mov_b64 exec, -1
    L_side_nz:
    """)
    for i in range(5):
        A(f"""
        s_mul_i32 s32, {s(S_W)}, 320
        s_add_u32 s32, s32, {64 * i}
        v_add_u32 v2, s32, {v(L)}
        v_mul_u32_u24 v3, 3277, v2
        v_lshrrev_b32 v3, 18, v3
        v_mul_u32_u24 v4, 80, v3
        v_sub_u32 v4, v2, v4
        v_and_b32 v5, 3, v3
        v_lshlrev_b32 v6, 1, v5
        v_xor_b32 v4, v6, v4
        v_mul_u32_u24 v6, 1280, v3
        v_lshl_add_u32 {v(20 + i)}, v4, 4, v6
        v_bfe_u32 v6, v3, 2, 1
        v_lshl_add_u32 v5, v6, 4, v5
        v_lshrrev_b32 v6, 3, v3
        v_lshl_add_u32 v5, v6, 2, v5
        v_mul_u32_u24 v5, 1280, v5
        v_lshl_add_u32 {v(40 + i)}, v4, 4, v5
        """)
    def dma(i):
        def issue(reg):
            for q in range(5):
                A(f"s_mov_b32 m0, s33\ns_add_u32 s33, s33, 1024\nbuffer_load_dwordx4 {v(reg + q)}, s[4:7], s35 offen lds")
        A(f"""
        s_mul_i32 s33, {s(S_W)}, 5120
        s_add_u32 s33, s33, {40960 * (i & 3)}
        """)
        if i >= 3:
            lab = f"L_side_wo{i}"
            if i == 3:
                A(f"s_cmp_ge_u32 {s(K[i])}, 54\ns_cbranch_scc1 {lab}")
                A(f"s_mul_i32 s35, {s(K[i])}, {32 * 1280}")
                issue(20)
                A(f"s_branch {lab}_done")
            A.label(lab)
            A(f"""
            s_mov_b32 s4, s60
            s_mov_b32 s5, s61
            s_mov_b32 s6, {WO_BYTES}
            s_sub_u32 s35, {s(K[i])}, 54
            s_mul_i32 s35, s35, {32 * 1280}
            s_cmp_ge_u32 {s(K[i])}, {NK}
            s_cselect_b32 s35, 0x7f000000, s35
            """)
            issue(40)
            A.label(lab + "_done")
        else:
            A(f"s_mul_i32 s35, {s(K[i])}, {32 * 1280}")
            issue(20)
    dma(0); dma(1)
    A(f"""
    v_lshrrev_b32 v2, 4, {v(L)}
    v_bfe_u32 v3, {v(L)}, 2, 2
    v_lshl_add_u32 v4, v2, 3, v3
    v_mul_u32_u24 v4, 1280, v4
    v_and_b32 v5, 1, {v(L)}
    v_lshl_add_u32 v4, v5, 3, v4
    v_bfe_u32 v5, {v(L)}, 1, 1
    v_lshlrev_b32 v3, 1, v3
    """)
    for n in range(5):
        A(f"""
        s_mul_i32 s32, {s(S_W)}, 10
        s_add_u32 s32, s32, {2 * n}
        v_add_u32 v6, s32, v5
        v_xor_b32 v6, v6, v3
        v_lshl_add_u32 {v(12 + n)}, v6, 4, v4
        """)
    A(f"v_lshlrev_b32 v31, 4, {v(L)}")
    A("s_waitcnt vmcnt(10)")
    row_stats(A)
    def job(i):
        for n in range(5):
            for p in range(2):
                reg = 92 + n if i & 2 else 12 + n
                A(f"ds_read_b64_tr_b16 {v(48 + 4 * n + 2 * p, 2)}, {v(reg)} offset:{40960 * (i & 1) + 4 * p * 1280}")
        A(f"""
        s_mul_i32 s34, {s(S_W)}, {NK}
        s_add_u32 s34, s34, {s(K[i])}
        s_mul_i32 s34, s34, 5120
        s_add_u32 s34, s34, {WDF}
        s_cmp_ge_u32 {s(K[i])}, {NK}
        s_cselect_b32 s34, 0x7f000000, s34
        s_waitcnt lgkmcnt(0)
        """)
        for n in range(5):
            A(f"buffer_store_dwordx4 {v(48 + 4 * n, 4)}, v31, s[12:15], s34 offen{ST}")
            if n < 4: A("s_add_u32 s34, s34, 1024")
        A("s_nop 1")
    for n in range(5): A(f"v_add_u32 {v(92 + n)}, 81920, {v(12 + n)}")
    def flags(mask):
        lab = A.uid("L_sf")
        A(f"""
        s_cmp_lg_u32 {s(S_W)}, 0
        s_cbranch_scc1 {lab}
        v_mov_b32 v7, 1
        s_mov_b64 exec, {mask}
        buffer_store_dword v7, v30, s[12:15], 0 offen sc1
        s_mov_b64 exec, -1
        {lab}:
        """)
    A("s_waitcnt vmcnt(6)\ns_barrier")
    job(0)
    A("s_waitcnt vmcnt(5)\ns_barrier")
    count_in(A)
    job(1)
    dma(2); dma(3)
    A("s_waitcnt vmcnt(10)\ns_barrier")
    flags(3)
    A("s_waitcnt vmcnt(5)\ns_barrier")
    job(2)
    A("s_waitcnt vmcnt(5)\ns_barrier")
    dma(4)
    job(3)
    A("s_waitcnt vmcnt(0)\ns_barrier")
    flags(12)
    job(4)
    A("s_waitcnt vmcnt(0)\ns_barrier")
    flags(16)

def gen_p1(A, KN, tail):
    A(f".globl {KN}\n.p2align 8\n.type {KN},@function\n{KN}:")
    A(f"s_cmp_ge_u32 s2, 256\ns_cbranch_scc1 L_end_{KN}")
    Prof.stamp(A, 0, real=True); Prof.stamp(A, 1)
    A(f"""
    s_load_dwordx4 s[36:39], s[0:1], 0
    s_load_dwordx4 s[40:43], s[0:1], 32
    s_load_dwordx4 s[44:47], s[0:1], 64
    s_load_dwordx2 s[60:61], s[0:1], 16
    s_load_dwordx2 s[62:63], s[0:1], 48
    s_load_dwordx2 s[64:65], s[0:1], 56
    v_and_b32 {v(V_L)}, 63, v0
    v_lshrrev_b32 v2, 6, v0
    s_nop 0
    v_readfirstlane_b32 {s(S_W)}, v2
    """)
    if CODEPF: code_prefetch(A, KN)
    decode(A)
    A(f"""
    s_waitcnt lgkmcnt(0)
    s_mov_b32 s12, s46
    s_mov_b32 s13, s47
    s_mov_b32 s14, {WS_USED}
    s_mov_b32 s15, 0x20000
    s_mov_b32 s16, s44
    s_mov_b32 s17, s45
    s_mov_b32 s18, 256
    s_mov_b32 s19, 0x20000
    """)
    Prof.stamp(A, 10)
    A(f"""
    s_cmp_eq_u32 {s(S_CIDX)}, 15
    s_cbranch_scc1 L_side
    """)
    setup_main(A)
    A(f"s_cmp_eq_u32 {s(S_B)}, 2\ns_cbranch_scc1 L_b2")
    slow = []
    first_reads(A, 3)
    main_loop(A, 3, slow)
    epi_common(A, 3, slow)
    A(f"s_cmp_eq_u32 {s(S_TYPE)}, 1\ns_cbranch_scc1 L_q3\ns_cmp_eq_u32 {s(S_TYPE)}, 2\ns_cbranch_scc1 L_kv3")
    epi_gu(A)
    A("s_branch L_p1_done")
    A.label("L_q3"); epi_q(A, 3); A("s_branch L_p1_done")
    A.label("L_kv3"); epi_kv(A, 3); A("s_branch L_p1_posted")
    A.label("L_b2")
    first_reads(A, 2)
    main_loop(A, 2, slow)
    epi_common(A, 2, slow)
    A(f"s_cmp_eq_u32 {s(S_TYPE)}, 2\ns_cbranch_scc1 L_kv2")
    epi_q(A, 2); A("s_branch L_p1_done")
    A.label("L_kv2"); epi_kv(A, 2)
    A("s_branch L_p1_posted")
    A.label("L_p1_done")
    post_f1(A)
    A.label("L_p1_posted")
    tail(A, "main")
    for fn in slow: fn(A)
    A.label("L_side"); side(A)
    tail(A, "side")
    A.label(f"L_end_{KN}")
    A("s_endpgm")
```

```python
from asmlib import Asm, v, a, s, Prof
from common2 import *
import p1
from p1 import S_W, S_RB, S_CIDX, S_TYPE, S_R, S_N, V_L, XBASE, XSLOT, WSLOT, SEGB, LFL, spread

F_FREE = 1; F_READY = 5; F_H = 9
DUTY = 3

S_H = 24; S_A = 25; S_A4 = 26; S_BIG = 27; S_U = 28; S_HD = 29; S_A0 = 30; S_KB = 31; S_HALF = 67
V_A = 2; V_B = 3; V_LB = 7; V_FL = 10; V_T = 11
ACC = 160; HB = 12
def acc(t, nt): return ACC + (t * 5 + nt) * 4
def wa(slot, nt):
    if slot == 0: return 76 + 4 * nt
    if slot == 1: return 240 + 4 * nt if nt < 4 else 156
    return p1.V_EA + (slot - 2) * 20 + 4 * nt
def hb(ring, t): return HB + ring * 16 + t * 4
SLOT = [0, 1, 0, 1, 0, 1, 0, 2, 3, 4, 1, 0, 2, 3, 4, 1, 0, 2, 3]
BOUND = 0x200000

SETPRIO = True
PROF2 = False
DIAGKF = False
def stamp2(A, k):
    if not PROF2: return
    A(f"s_memrealtime s[70:71]\ns_waitcnt lgkmcnt(0)\nv_writelane_b32 v0, s70, {k}")
def stamp2x(A, k):
    if not PROF2: return
    A(f"s_memrealtime s[68:69]\ns_waitcnt lgkmcnt(0)\nv_writelane_b32 v0, s68, {k}")
def flush2(A):
    if not PROF2: return
    A(f"""
    s_lshl_b32 s70, s2, 3
    s_add_u32 s70, s70, {s(S_W)}
    s_lshl_b32 s70, s70, 8
    s_add_u32 s70, s70, 0x1600000
    s_mov_b32 s14, 0x2000000
    v_lshlrev_b32 v11, 2, {v(V_L)}
    buffer_store_dword v0, v11, s[12:15], s70 offen
    """)

def foff(f):
    if f < 18: return 0, (f // 6) * WSLOT + ((f % 6) // 3) * SEGB + (f % 3) * 1024
    if f < 24: return 1, ((f % 6) // 3) * SEGB + (f % 3) * 1024
    g = 10 + (f - 24) // 4
    return 2, (g % 3) * XSLOT + ((f - 24) % 4) * 1024

class Q:
    def __init__(self, A, cnt): self.A = A; self.cnt = cnt; self.q = []
    def issue(self, text, tag):
        self.A(text); self.q.append(tag)
    def need(self, *tags):
        last = -1
        for i, t in enumerate(self.q):
            if t in tags: last = i
        if last >= 0:
            n = len(self.q) - 1 - last
            assert n <= (63 if self.cnt == "vmcnt" else 15), (self.cnt, n)
            self.A(f"s_waitcnt {self.cnt}({n})")
            self.q = self.q[last + 1:]
    def clear(self): self.q = []

def poll(A, name, addr, nlanes, srd="s[12:15]", empty=0):
    mask = (1 << nlanes) - 1
    A(f"""
    s_mov_b32 s34, {hex(mask & 0xffffffff)}
    s_mov_b32 s35, {hex(mask >> 32)}
    s_mov_b64 exec, s[34:35]
    s_mov_b32 s71, 0
    {name}_spin:
    buffer_load_dword {v(V_T)}, {addr}, {srd}, 0 offen sc1
    s_waitcnt vmcnt(0)
    v_cmp_ne_u32 vcc, {empty}, {v(V_T)}
    s_add_u32 s71, s71, 1
    s_nop 3
    s_cmp_eq_u64 vcc, s[34:35]
    s_cbranch_scc1 {name}_ok
    s_cmp_lt_u32 s71, {BOUND}
    s_cbranch_scc1 {name}_spin
    {name}_ok:
    s_mov_b64 exec, -1
    """)

SP = 72
def spoll(A, name, base, offs, kind):
    A(f"s_mov_b32 s71, 0\n{name}_spin:")
    for i, o in enumerate(offs):
        b, o = o if isinstance(o, tuple) else (base, o)
        A(f"s_buffer_load_dword {s(SP + i)}, s[12:15], {b} offset:{o} glc")
    A("s_add_u32 s71, s71, 1\ns_waitcnt lgkmcnt(0)")
    op = {"nz": "s_min_u32", "bit0": "s_and_b32", "nm1": "s_max_u32"}[kind]
    for i in range(1, len(offs)):
        A(f"{op} {s(SP)}, {s(SP)}, {s(SP + i)}")
    A({"nz": f"s_cmp_lg_u32 {s(SP)}, 0", "bit0": f"s_bitcmp1_b32 {s(SP)}, 0", "nm1": f"s_cmp_lg_u32 {s(SP)}, -1"}[kind])
    A(f"""
    s_cbranch_scc1 {name}_ok
    s_cmp_lt_u32 s71, {BOUND}
    s_cbranch_scc1 {name}_spin
    {name}_ok:
    """)

def spoll_wide(A, name, off, n):
    A(f"""
    s_mov_b32 s71, 0
    {name}_spin:
    s_buffer_load_dwordx{n} s[{SP}:{SP + n - 1}], s[12:15], {off} glc
    s_add_u32 s71, s71, 1
    s_waitcnt lgkmcnt(0)
    """)
    for i in range(1, n):
        A(f"s_min_u32 {s(SP)}, {s(SP)}, {s(SP + i)}")
    A(f"""
    s_cmp_lg_u32 {s(SP)}, 0
    s_cbranch_scc1 {name}_ok
    s_cmp_lt_u32 s71, {BOUND}
    s_cbranch_scc1 {name}_spin
    {name}_ok:
    """)

def lds_wait(A, name, addr, word):
    A(f"""
    s_mov_b32 s71, 0
    {name}_spin:
    ds_read_b32 {v(V_T)}, {addr} offset:{4 * word}
    s_add_u32 s71, s71, 1
    s_waitcnt lgkmcnt(0)
    v_readfirstlane_b32 s34, {v(V_T)}
    s_nop 1
    s_cmp_lg_u32 s34, 0
    s_cbranch_scc1 {name}_ok
    s_cmp_lt_u32 s71, {BOUND}
    s_cbranch_scc1 {name}_spin
    {name}_ok:
    """)

def lds_set_text(addr, word):
    return f"v_mov_b32 {v(V_T)}, 1\nds_write_b32 {addr}, {v(V_T)} offset:{4 * word}"

def kstart(A, dst, w):
    A(f"""
    s_mul_i32 {dst}, {w}, 14
    s_cmp_eq_u32 {w}, 3
    s_cselect_b32 s35, 1, 0
    s_sub_u32 {dst}, {dst}, s35
    """)

def common(A):
    L = V_L
    A(f"""
    s_and_b32 {s(S_U)}, {s(S_W)}, 3
    s_mov_b32 {s(S_BIG)}, 0x7f000000
    v_lshlrev_b32 {v(V_A)}, 4, {v(L)}
    s_mul_i32 s34, {s(S_U)}, 3072
    v_add_u32 {v(V_LB)}, s34, {v(V_A)}
    v_add_u32 {v(V_LB + 1)}, {3 * WSLOT}, {v(V_LB)}
    s_lshl_b32 s34, {s(S_U)}, 12
    s_add_u32 s34, s34, {XBASE}
    v_add_u32 {v(V_LB + 2)}, s34, {v(V_A)}
    s_lshl_b32 s34, {s(S_U)}, 2
    s_add_u32 s34, s34, {LFL}
    v_mov_b32 {v(V_FL)}, s34
    """)
    for t in range(4):
        A(f"""
        s_add_u32 s34, {s(S_U)}, {t}
        s_and_b32 s34, s34, 3
        s_lshl_b32 s34, s34, 10
        v_add_u32 {v(V_B + t)}, s34, {v(V_A)}
        """)

def a_loads(slot, base, base4):
    L = []
    for nt in range(5):
        if nt < 4: L.append(f"buffer_load_dwordx4 {v(wa(slot, nt), 4)}, {v(V_A)}, s[12:15], {base} offen offset:{1024 * nt}")
        else: L.append(f"buffer_load_dwordx4 {v(wa(slot, nt), 4)}, {v(V_A)}, s[12:15], {base4} offen")
    return L

def a_next(A):
    A(f"s_add_u32 {s(S_A)}, {s(S_A)}, 5120\ns_add_u32 {s(S_A4)}, {s(S_A4)}, 5120")

def lds_frag(dst, f):
    b, off = foff(f)
    return f"ds_read_b128 {v(dst, 4)}, {v(V_LB + b)} offset:{off}"

def preload_w(A):
    A(f"""
    s_mul_i32 s32, {s(S_U)}, 3072
    s_mov_b32 s33, {s(S_A0)}
    """)
    for g in range(8):
        A(f"s_add_u32 m0, s32, {(g // 2) * WSLOT + (g % 2) * SEGB}\ns_nop 0")
        for q in range(3):
            A(f"buffer_load_dwordx4 {v(V_A)}, s[12:15], s33 offen offset:{1024 * q} lds")
        if g < 7: A("s_add_u32 s33, s33, 3072")

def preload_x(A):
    A(f"s_add_u32 s33, {s(S_A0)}, {24 * 1024}\ns_lshl_b32 s32, {s(S_U)}, 12\ns_add_u32 s32, s32, {XBASE}")
    for g in (10, 11, 12):
        A(f"s_add_u32 m0, s32, {(g % 3) * XSLOT}\ns_nop 0")
        for q in range(4 if g < 12 else 3):
            A(f"buffer_load_dwordx4 {v(V_A)}, s[12:15], s33 offen offset:{1024 * q} lds")
        if g < 12: A("s_add_u32 s33, s33, 4096")

def compute(A):
    L = V_L
    vq = Q(A, "vmcnt"); lq = Q(A, "lgkmcnt")
    VP = wa(0, 0)
    kstart(A, "s33", s(S_U))
    A(f"""
    s_mul_i32 s34, {s(S_N)}, {NK}
    s_add_u32 s34, s34, s33
    s_mul_i32 {s(S_A0)}, s34, 5120
    s_add_u32 {s(S_A0)}, {s(S_A0)}, {WDF}
    s_mul_i32 s34, {s(S_R)}, 54
    s_add_u32 s34, s34, s33
    s_lshl_b32 {s(S_H)}, s34, 12
    s_add_u32 {s(S_H)}, {s(S_H)}, {HF}
    s_cmp_eq_u32 {s(S_TYPE)}, 3
    s_cbranch_scc0 L_p2_wring
    v_lshlrev_b32 v11, 7, {v(L)}
    v_add_u32 {v(VP)}, {FW}, v11
    v_add_u32 {v(VP + 1)}, {64 * 128}, {v(VP)}
    """)
    poll(A, "L_p2_fw", v(VP), 64)
    poll(A, "L_p2_fx", v(VP + 1), NK - 64)
    preload_w(A)
    A.label("L_p2_wring")
    A(f"s_add_u32 s33, {s(S_A0)}, {7 * 5120}\ns_add_u32 s32, s33, 4096")
    p1.a_early_loads(A, "s33", "s32", v(V_A))
    A(f"s_cmp_lt_u32 {s(S_TYPE)}, 2\ns_cbranch_scc1 L_p2_loaded")
    preload_x(A)
    A(f"s_cmp_eq_u32 {s(S_TYPE)}, 3\ns_cbranch_scc0 L_p2_loaded\ns_waitcnt vmcnt(0)")
    A.label("L_p2_loaded")
    A(f"""
    s_add_u32 {s(S_A)}, {s(S_A0)}, {10 * 5120}
    s_add_u32 {s(S_A4)}, {s(S_A)}, 4096
    """)
    stamp2(A, 1)
    lds_wait(A, "L_p2_h", v(V_FL), F_H)
    stamp2(A, 2)
    def b_load(st, t):
        return f"buffer_load_dwordx4 {v(hb(st % 4, t), 4)}, {v(V_B + t)}, s[12:15], {s(S_H)} offen"
    def h_next(st):
        if st == 12:
            A(f"s_add_u32 {s(S_H)}, {s(S_H)}, 4096\ns_cmp_ge_u32 {s(S_U)}, 2\ns_cselect_b32 {s(S_H)}, {s(S_BIG)}, {s(S_H)}")
        else:
            A(f"s_add_u32 {s(S_H)}, {s(S_H)}, 4096")
    for st in range(4):
        for t in range(4): vq.issue(b_load(st, t), ("B", st, t))
        h_next(st)
    for st in range(2):
        for nt in range(5): lq.issue(lds_frag(wa(SLOT[st], nt), 5 * st + nt), ("A", st))
    for st in range(14):
        sl = SLOT[st]
        if st < 7: lq.need(("A", st))
        elif st >= 10: vq.need(("A", st))
        if st == 3:
            lq.issue(lds_set_text(v(V_FL), F_FREE), "flag")
        for t in range(4):
            vq.need(("B", st, t))
            for nt in range(5):
                c = "0" if st == 0 else v(acc(t, nt), 4)
                A(f"v_mfma_f32_16x16x32_bf16 {v(acc(t, nt), 4)}, {v(wa(sl, nt), 4)}, {v(hb(st % 4, t), 4)}, {c}")
                if t == 3:
                    if st + 2 < 7:
                        lq.issue(lds_frag(wa(sl, nt), 5 * (st + 2) + nt), ("A", st + 2))
                    elif st >= 5:
                        if st == 8 and nt == 0:
                            A(f"s_cmp_ge_u32 {s(S_U)}, 2\ns_cselect_b32 {s(S_A)}, {s(S_BIG)}, {s(S_A)}\ns_cselect_b32 {s(S_A4)}, {s(S_BIG)}, {s(S_A4)}")
                        if st == 9 and nt == 0:
                            A(f"""
                            s_mul_i32 s34, {s(S_N)}, {NK}
                            s_mul_i32 s35, {s(S_U)}, 5
                            s_add_u32 s34, s34, s35
                            s_add_u32 s34, s34, 54
                            s_mul_i32 {s(S_A)}, s34, 5120
                            s_add_u32 {s(S_A)}, {s(S_A)}, {WDF}
                            s_add_u32 {s(S_A4)}, {s(S_A)}, 4096
                            """)
                        vq.issue(a_loads(sl, s(S_A), s(S_A4))[nt], ("A", st + 5))
            if st + 4 < 14:
                vq.issue(b_load(st + 4, t), ("B", st + 4, t))
        if st + 4 < 14: h_next(st + 4)
        if st >= 5: a_next(A)
        if st in (0, 6, 9): stamp2(A, {0: 3, 6: 4, 9: 5}[st])
    stamp2(A, 6)
    stamp2(A, 7)
    lds_wait(A, "L_p2_rd", v(V_FL), F_READY)
    lq.clear()
    stamp2(A, 8)
    for k in range(4):
        for t in range(4): lq.issue(lds_frag(hb(k, t), 4 * k + t), ("B", 14 + k, t))
    A(f"""
    v_and_b32 v4, 15, {v(L)}
    s_lshl_b32 s34, {s(S_R)}, 6
    s_lshl_b32 s35, {s(S_U)}, 4
    s_add_u32 s34, s34, s35
    v_add_u32 v4, s34, v4
    v_mul_u32_u24 v4, 1280, v4
    v_lshrrev_b32 v5, 4, {v(L)}
    v_lshl_add_u32 v4, v5, 3, v4
    s_mul_i32 s34, {s(S_N)}, 160
    v_add_u32 v3, s34, v4
    s_mov_b32 s8, s36
    s_mov_b32 s9, s37
    s_mov_b32 s10, {X_BYTES}
    s_mov_b32 s11, 0x20000
    s_mov_b32 s4, s64
    s_mov_b32 s5, s65
    s_mov_b32 s6, {X_BYTES}
    s_mov_b32 s7, 0x20000
    """)
    V_X = wa(SLOT[14], 0)
    V_O = 3
    for st in range(14, 19):
        k = st - 14
        sl = SLOT[st]
        vq.need(("A", st))
        for t in range(4):
            lq.need(("B", st, t))
            for nt in range(5):
                A(f"v_mfma_f32_16x16x32_bf16 {v(acc(t, nt), 4)}, {v(wa(sl, nt), 4)}, {v(hb(k % 4, t), 4)}, {v(acc(t, nt), 4)}")
            if k == 0:
                lq.issue(lds_frag(hb(0, t), 16 + t), ("B", 18, t))
        if k == 0:
            for nt in range(5):
                vq.issue(f"buffer_load_dwordx2 {v(V_X + 2 * nt, 2)}, {v(V_O)}, s[8:11], 0 offen offset:{32 * nt}", "X")
    stamp2(A, 9)
    A("s_nop 7")
    for t in range(1, 4):
        for nt in range(5):
            b, off = foff(5 * (t - 1) + nt)
            A(f"ds_write_b128 {v(V_LB)}, {v(acc(t, nt), 4)} offset:{off}")
    for t in range(1, 4):
        A(f"""
        s_sub_u32 s34, {s(S_U)}, {t}
        s_and_b32 s34, s34, 3
        s_mul_i32 s34, s34, 3072
        v_add_u32 {v(V_B + t)}, s34, {v(V_A)}
        """)
    A("s_waitcnt lgkmcnt(0)\ns_barrier")
    RD = HB
    for t in range(1, 4):
        for nt in range(5):
            b, off = foff(5 * (t - 1) + nt)
            A(f"ds_read_b128 {v(RD + (t - 1) * 20 + 4 * nt, 4)}, {v(V_B + t)} offset:{off}")
    A("s_mov_b32 s35, 0xffff0000")
    for t in range(1, 4):
        A(f"s_waitcnt lgkmcnt({15 - 5 * t})")
        for q in range(20):
            A(f"v_add_f32 {v(ACC + q)}, {v(ACC + q)}, {v(RD + (t - 1) * 20 + q)}")
    A("s_waitcnt vmcnt(0)")
    T0 = wa(0, 0)
    for nt in range(5):
        x0, x1 = V_X + 2 * nt, V_X + 2 * nt + 1
        r = acc(0, nt)
        A(f"""
        v_lshlrev_b32 {v(T0)}, 16, {v(x0)}
        v_and_b32 {v(T0 + 1)}, s35, {v(x0)}
        v_lshlrev_b32 {v(T0 + 2)}, 16, {v(x1)}
        v_and_b32 {v(T0 + 3)}, s35, {v(x1)}
        v_add_f32 {v(r)}, {v(r)}, {v(T0)}
        v_add_f32 {v(r + 1)}, {v(r + 1)}, {v(T0 + 1)}
        v_add_f32 {v(r + 2)}, {v(r + 2)}, {v(T0 + 2)}
        v_add_f32 {v(r + 3)}, {v(r + 3)}, {v(T0 + 3)}
        v_cvt_pk_bf16_f32 {v(r)}, {v(r)}, {v(r + 1)}
        v_cvt_pk_bf16_f32 {v(r + 1)}, {v(r + 2)}, {v(r + 3)}
        buffer_store_dwordx2 {v(r, 2)}, {v(V_O)}, s[4:7], 0 offen offset:{32 * nt}
        """)
    stamp2(A, 10)
    flush2(A)
    A("s_endpgm")

KP = 96
KX = 164
def kv_issue(A):
    L = V_L
    X = KX
    if DUTY == 3:
        A(f"s_lshl_b32 {s(S_HD)}, {s(S_RB)}, 1\ns_lshr_b32 s34, {s(S_U)}, 1\ns_add_u32 {s(S_HD)}, {s(S_HD)}, s34\ns_and_b32 s34, {s(S_U)}, 1")
    else:
        A(f"s_lshl_b32 {s(S_HD)}, {s(p1.S_C)}, 3\ns_lshr_b32 s34, {s(S_RB)}, 1\ns_add_u32 {s(S_HD)}, {s(S_HD)}, s34\ns_and_b32 s34, {s(S_RB)}, 1")
    A(f"""
    s_lshl_b32 {s(S_KB)}, {s(S_HD)}, 4
    s_mul_i32 {s(S_KB)}, {s(S_KB)}, {KVP_BLK}
    s_add_u32 {s(S_KB)}, {s(S_KB)}, {KVP}
    s_mov_b32 {s(S_HALF)}, s34
    s_mul_i32 s35, s34, 55
    s_lshl_b32 s32, s35, 4
    s_add_u32 s32, s32, {s(S_KB)}
    v_add_u32 {v(X + 2)}, s35, {v(L)}
    s_mul_i32 s34, s34, 5
    s_sub_u32 s34, 55, s34
    v_cmp_gt_u32 s[56:57], s34, {v(L)}
    v_lshlrev_b32 {v(X + 1)}, 4, {v(X + 2)}
    v_mov_b32 {v(X + 5)}, {s(S_BIG)}
    v_mul_u32_u24 {v(X + 3)}, 205, {v(X + 2)}
    v_lshrrev_b32 {v(X + 3)}, 10, {v(X + 3)}
    v_cndmask_b32 {v(X + 1)}, {v(X + 5)}, {v(X + 1)}, s[56:57]
    v_mul_u32_u24 {v(X + 4)}, 5, {v(X + 3)}
    v_sub_u32 {v(X + 4)}, {v(X + 2)}, {v(X + 4)}
    v_lshlrev_b32 {v(X + 3)}, 6, {v(X + 3)}
    v_lshl_add_u32 {v(X + 3)}, {v(X + 4)}, 3, {v(X + 3)}
    s_mul_i32 s34, {s(S_HD)}, {KVF_HEAD}
    s_add_u32 s34, s34, {KVF + 8}
    v_add_u32 {v(X + 3)}, s34, {v(X + 3)}
    v_cndmask_b32 {v(X + 3)}, {v(X + 5)}, {v(X + 3)}, s[56:57]
    s_lshr_b32 s34, {s(S_HD)}, 3
    s_lshl_b32 s34, s34, 7
    s_and_b32 s35, {s(S_HD)}, 7
    s_lshl_b32 s35, s35, 3
    s_add_u32 s34, s34, s35
    s_lshl_b32 s35, {s(S_HALF)}, 2
    s_add_u32 s34, s34, s35
    s_add_u32 s34, s34, {KFL}
    v_lshlrev_b32 {v(X + 4)}, 9, {v(L)}
    v_add_u32 {v(X + 4)}, s34, {v(X + 4)}
    """)
    stamp2(A, 1)
    spoll(A, "L_m_kv", "s32", [KVP_BLK * i for i in range(16)], "bit0")
    stamp2(A, 2)
    kv_loads(A)

def kv_loads(A):
    A(f"s_mov_b32 s32, {s(S_KB)}")
    for i in range(16):
        A(f"buffer_load_dwordx4 {v(KP + 4 * i, 4)}, {v(KX + 1)}, s[12:15], s32 offen sc1")
        if i < 15: A(f"s_add_u32 s32, s32, {KVP_BLK}")

def kv_valid(A):
    P, X = KP, KX
    A(f"v_and_b32 {v(X + 2)}, {v(P)}, {v(P + 4)}")
    for i in range(2, 16):
        A(f"v_and_b32 {v(X + 2)}, {v(X + 2)}, {v(P + 4 * i)}")
    A(f"""
    v_and_b32 {v(X + 2)}, 1, {v(X + 2)}
    s_nop 0
    v_cndmask_b32 {v(X + 2)}, 1, {v(X + 2)}, s[56:57]
    v_cmp_ne_u32 vcc, 0, {v(X + 2)}
    s_nop 4
    s_cmp_eq_u64 vcc, -1
    """)

def kv_sum(A, newer):
    P, X = KP, KX
    A(f"s_waitcnt vmcnt({newer})")
    kv_valid(A)
    A(f"""
    s_cbranch_scc1 L_m_valid
    s_mov_b32 s70, 0
    L_m_again:
    """)
    kv_loads(A)
    A("s_add_u32 s70, s70, 1\ns_waitcnt vmcnt(0)")
    kv_valid(A)
    A(f"""
    s_cbranch_scc1 L_m_valid
    s_cmp_lt_u32 s70, {BOUND >> 4}
    s_cbranch_scc1 L_m_again
    L_m_valid:
    """)
    stamp2(A, 10)
    for step in (8, 4, 2, 1):
        for i in range(step):
            for q in range(4):
                A(f"v_add_f32 {v(P + 4 * i + q)}, {v(P + 4 * i + q)}, {v(P + 4 * (i + step) + q)}")
    A(f"""
    v_cvt_pk_bf16_f32 {v(P)}, {v(P)}, {v(P + 1)}
    v_cvt_pk_bf16_f32 {v(P + 1)}, {v(P + 2)}, {v(P + 3)}
    v_min_u32 {v(P)}, -2, {v(P)}
    v_min_u32 {v(P + 1)}, -2, {v(P + 1)}
    buffer_store_dwordx2 {v(P, 2)}, {v(X + 3)}, s[12:15], 0 offen sc1
    buffer_store_dword {v(X + 5)}, {v(X + 4)}, s[12:15], 0 offen sc1
    """)
    stamp2(A, 3)

KB = {0: [0], 1: [0, 1], 2: [0, 1], 3: [1, 2], 4: [1, 2], 5: [2, 3], 6: [2, 3], 7: [3, 4], 8: [3, 4], 9: [4]}
ZK = {0: [0, 1, 2], 1: [2, 3, 4]}
def aux(A):
    L = V_L
    PQ = 12; KF = 92; ZF = 164; RC = 188; D = 220; TS = 252
    def pq(k, t): return PQ + (k * 4 + t) * 4
    kf = {}
    for j in range(10):
        for k in KB[j]: kf[(j, k)] = KF + 4 * len(kf)
    zf = {}
    for c in range(2):
        for k in ZK[c]: zf[(c, k)] = ZF + 4 * len(zf)
    def rc(t, h): return RC + 8 * t + h
    if SETPRIO: A("s_setprio 3")
    for r in (1, 3, 4, 5): A(f"v_mov_b32 {v(KX + r)}, {s(S_BIG)}")
    A(f"s_cmp_eq_u32 {s(S_TYPE)}, {DUTY}\ns_cselect_b32 s66, 1, 0")
    if DUTY == 2:
        A(f"s_cmp_eq_u32 {s(S_U)}, 0\ns_cselect_b32 s66, s66, 0")
    A("s_cmp_eq_u32 s66, 0\ns_cbranch_scc1 L_p2_nom")
    kv_issue(A)
    A.label("L_p2_nom")
    A(f"""
    s_lshl_b32 s33, s2, 7
    s_lshl_b32 s34, {s(S_U)}, 4
    s_add_u32 s33, s33, s34
    s_add_u32 s33, s33, {INB}
    s_mul_i32 s34, {s(S_R)}, 20
    s_mul_i32 s35, {s(S_U)}, 5
    s_add_u32 s34, s34, s35
    s_lshl_b32 s32, s34, 12
    s_add_u32 s32, s32, {PQF}
    s_mov_b32 s70, 0
    s_mov_b32 s71, 0
    """)
    stamp2x(A, 4)
    A(f"""
    L_p2_in_spin:
    s_buffer_load_dwordx4 s[{SP}:{SP + 3}], s[12:15], s33 glc
    s_add_u32 s71, s71, 1
    s_waitcnt lgkmcnt(0)
    s_bitcmp1_b32 s70, 0
    s_cbranch_scc1 L_p2_in_q
    s_min_u32 {s(SP)}, {s(SP)}, {s(SP + 1)}
    s_min_u32 {s(SP)}, {s(SP)}, {s(SP + 2)}
    s_cmp_eq_u32 {s(SP)}, 0
    s_cbranch_scc1 L_p2_in_q
    {lds_set_text(v(V_FL), F_H)}
    s_or_b32 s70, s70, 1
    L_p2_in_q:
    s_bitcmp1_b32 s70, 1
    s_cbranch_scc1 L_p2_in_next
    s_cmp_eq_u32 {s(SP + 3)}, 0
    s_cbranch_scc1 L_p2_in_next
    """)
    stamp2x(A, 5)
    for k in range(5):
        for t in range(4):
            A(f"buffer_load_dwordx4 {v(pq(k, t), 4)}, {v(V_B + t)}, s[12:15], s32 offen")
        if k < 4: A("s_add_u32 s32, s32, 4096")
    A(f"""
    s_or_b32 s70, s70, 2
    L_p2_in_next:
    s_cmp_eq_u32 s70, 3
    s_cbranch_scc1 L_p2_in_ok
    s_cmp_lt_u32 s71, {BOUND}
    s_cbranch_scc1 L_p2_in_spin
    {lds_set_text(v(V_FL), F_H)}
    L_p2_in_ok:
    """)
    A("s_cmp_eq_u32 s66, 0\ns_cbranch_scc1 L_p2_nosum")
    kv_sum(A, 20)
    A.label("L_p2_nosum")
    A(f"""
    s_mul_i32 s33, {s(S_U)}, {8 * KVF_HEAD}
    s_add_u32 s33, s33, {KVF}
    v_cmp_le_u32 s[48:49], 16, {v(L)}
    v_cmp_le_u32 s[50:51], 32, {v(L)}
    v_cmp_le_u32 s[52:53], 48, {v(L)}
    s_mov_b32 s70, 0
    """)
    A.label("L_p2_kv_again")
    T0, T1, T2, T3, T4 = D, D + 1, D + 2, D + 3, D + 4
    A(f"""
    v_lshrrev_b32 {v(T0)}, 4, {v(L)}
    v_and_b32 {v(T1)}, 15, {v(L)}
    v_mov_b32 {v(T4)}, {s(S_BIG)}
    """)
    def frag_addr(dst, R, W, k):
        A(f"""
        v_add_u32 {v(dst + 1)}, {32 * k}, {v(W)}
        v_add_u32 {v(dst + 2)}, {64 * k}, {v(R)}
        v_cmp_ge_u32 vcc, 20, {v(dst + 1)}
        s_nop 1
        v_cndmask_b32 {v(dst)}, {v(T4)}, {v(dst + 2)}, vcc
        """)
    for c in range(2):
        A(f"""
        v_and_b32 {v(T2)}, 3, {v(T1)}
        v_add_u32 {v(T2)}, {4 * c}, {v(T2)}
        v_mul_u32_u24 {v(T3)}, {KVF_HEAD - 40}, {v(T2)}
        v_lshl_add_u32 {v(T3)}, {v(T0)}, 4, {v(T3)}
        v_add_u32 {v(T3)}, {20 * 64 + 8}, {v(T3)}
        v_mul_u32_u24 {v(T2)}, 20, {v(T2)}
        v_lshlrev_b32 {v(TS)}, 3, {v(T0)}
        v_sub_u32 {v(T2)}, {v(TS)}, {v(T2)}
        v_add_u32 {v(T2)}, 4, {v(T2)}
        """)
        for k in ZK[c]: frag_addr(zf[(c, k)], T3, T2, k)
    for j in range(10):
        A(f"""
        v_add_u32 {v(TS)}, {16 * j}, {v(T1)}
        v_mul_u32_u24 {v(T2)}, 205, {v(TS)}
        v_lshrrev_b32 {v(T2)}, 12, {v(T2)}
        v_mul_u32_u24 {v(T3)}, {KVF_HEAD - 20 * 64 - 40}, {v(T2)}
        v_lshl_add_u32 {v(T3)}, {v(TS)}, 6, {v(T3)}
        v_lshl_add_u32 {v(T3)}, {v(T0)}, 4, {v(T3)}
        v_add_u32 {v(T3)}, 8, {v(T3)}
        v_mul_u32_u24 {v(T2)}, 20, {v(T2)}
        v_lshlrev_b32 {v(TS)}, 3, {v(T0)}
        v_sub_u32 {v(T2)}, {v(TS)}, {v(T2)}
        v_add_u32 {v(T2)}, 4, {v(T2)}
        """)
        for k in KB[j]: frag_addr(kf[(j, k)], T3, T2, k)
    A(f"""
    s_and_b32 s34, s2, 0xfc
    s_add_u32 s34, s34, {s(S_U)}
    s_lshl_b32 s32, s34, 7
    s_add_u32 s32, s32, {KFL}
    """)
    spoll_wide(A, "L_p2_kvh", "s32", 16)
    stamp2(A, 6)
    vq = Q(A, "vmcnt")
    for key, r in list(zf.items()) + list(kf.items()):
        vq.issue(f"buffer_load_dwordx4 {v(r, 4)}, {v(r)}, s[12:15], s33 offen sc1", key if r >= ZF else ("k",) + key)
    for c in range(2):
        for n, k in enumerate(ZK[c]):
            vq.need((c, k))
            for t in range(4):
                d = rc(t, 4 * c)
                A(f"v_mfma_f32_16x16x32_bf16 {v(d, 4)}, {v(zf[(c, k)], 4)}, {v(pq(k, t), 4)}, {'0' if n == 0 else v(d, 4)}")
    A(f"s_mov_b32 s34, {hex(0x358637bd)}")
    stamp2(A, 7)
    if PROF2 and DIAGKF:
        A("s_waitcnt vmcnt(0)"); stamp2(A, 11)
    lds_wait(A, "L_p2_fr", v(V_FL), F_FREE)
    stamp2(A, 12)
    pre = [f"v_add_f32 {v(RC + i)}, s34, {v(RC + i)}" for i in range(32)] + [f"v_rcp_f32 {v(RC + i)}, {v(RC + i)}" for i in range(32)]
    regs = sorted(list(zf.values()) + list(kf.values()))
    def mf_step(k, h):
        M = []
        for t in (2 * h, 2 * h + 1):
            for x, j in enumerate((2 * k, 2 * k + 1)):
                d = D + 16 * h + 8 * (t & 1) + 4 * x
                for n, kk in enumerate(KB[j]):
                    M.append((("k", j, kk), f"v_mfma_f32_16x16x32_bf16 {v(d, 4)}, {v(kf[(j, kk)], 4)}, {v(pq(kk, t), 4)}, {'0' if n == 0 else v(d, 4)}"))
        return M
    def va_step(k, h):
        V = []
        for t in (2 * h, 2 * h + 1):
            d0 = D + 16 * h + 8 * (t & 1)
            for x, j in enumerate((2 * k, 2 * k + 1)):
                d = d0 + 4 * x
                hs = sorted(set((4 * j + g) // 5 for g in range(4)))
                if len(hs) == 1:
                    r = rc(t, hs[0])
                else:
                    r = TS + 2 * x
                    m = {1: "s[48:49]", 2: "s[50:51]", 3: "s[52:53]"}[j % 5]
                    V.append(f"v_cndmask_b32 {v(r)}, {v(rc(t, hs[0]))}, {v(rc(t, hs[1]))}, {m}")
                for q in range(4):
                    V.append(f"v_mul_f32 {v(d + q)}, {v(d + q)}, {v(r)}")
            V.append(f"v_cvt_pk_bf16_f32 {v(d0)}, {v(d0)}, {v(d0 + 1)}")
            V.append(f"v_cvt_pk_bf16_f32 {v(d0 + 1)}, {v(d0 + 2)}, {v(d0 + 3)}")
            V.append(f"v_cvt_pk_bf16_f32 {v(d0 + 2)}, {v(d0 + 4)}, {v(d0 + 5)}")
            V.append(f"v_cvt_pk_bf16_f32 {v(d0 + 3)}, {v(d0 + 6)}, {v(d0 + 7)}")
            b, off = foff(4 * k + t)
            V.append(f"ds_write_b128 {v(V_LB + b)}, {v(d0, 4)} offset:{off}")
        return V
    steps = [(k, h) for k in range(5) for h in range(2)]
    prev = pre
    for i, (k, h) in enumerate(steps):
        M = mf_step(k, h)
        G = spread(prev, len(M))
        for (tag, txt), g in zip(M, G):
            vq.need(tag)
            A(txt)
            for x in g: A(x)
        prev = va_step(k, h)
        if i == 0: A("s_nop 1")
        if i == 1: stamp2(A, 13)
        if i == 5: stamp2(A, 14)
        if i == 9: stamp2(A, 15)
    chk = []
    chk.append(f"v_max3_u32 {v(TS + 3)}, {v(regs[0])}, {v(regs[0] + 1)}, {v(regs[0] + 2)}")
    rest = [regs[0] + 3] + [r + q for r in regs[1:] for q in range(4)]
    while rest:
        if len(rest) >= 2:
            chk.append(f"v_max3_u32 {v(TS + 3)}, {v(TS + 3)}, {v(rest[0])}, {v(rest[1])}"); rest = rest[2:]
        else:
            chk.append(f"v_max_u32 {v(TS + 3)}, {v(TS + 3)}, {v(rest[0])}"); rest = rest[1:]
    return_later = (chk, prev)
    for x in chk[:8]: A(x)
    for x in prev: A(x)
    for x in chk[8:]: A(x)
    A(f"""
    v_cmp_eq_u32 vcc, -1, {v(TS + 3)}
    s_add_u32 s70, s70, 1
    s_nop 3
    s_cmp_eq_u64 vcc, 0
    s_cbranch_scc1 L_p2_kv_ok
    s_cmp_lt_u32 s70, {BOUND >> 8}
    s_cbranch_scc1 L_p2_kv_again
    L_p2_kv_ok:
    """)
    stamp2(A, 8)
    A("s_waitcnt lgkmcnt(0)")
    A(lds_set_text(v(V_FL), F_READY))
    A("s_waitcnt lgkmcnt(0)")
    stamp2(A, 9)
    flush2(A)
    A("s_endpgm")

def side_entry(A, fused):
    L = V_L
    if fused:
        A("s_mov_b32 s71, 0")
        A.label("L_p2_cnt_spin")
        p1.cnt_issue(A, 93)
        A("s_add_u32 s71, s71, 1\ns_waitcnt vmcnt(0)")
        p1.cnt_cond(A, 93)
        A(f"""
        s_cbranch_scc1 L_p2_cnt_ok
        s_cmp_lt_u32 s71, {BOUND}
        s_cbranch_scc1 L_p2_cnt_spin
        L_p2_cnt_ok:
        v_lshlrev_b32 v92, 2, {v(L)}
        v_add_u32 v92, {LFL}, v92
        v_mov_b32 v93, 0
        ds_write_b32 v92, v93
        """)
    common(A)
    A("s_waitcnt vmcnt(0) lgkmcnt(0)\ns_barrier")


def body(A):
    A.label("L_p2_go")
    stamp2(A, 0)
    if PROF2 and Prof.on:
        A("v_writelane_b32 v0, s72, 20\nv_writelane_b32 v0, s88, 21\nv_writelane_b32 v0, s90, 22")
    A(f"s_cmp_ge_u32 {s(S_W)}, 4\ns_cbranch_scc1 L_p2_aux")
    compute(A)
    A.label("L_p2_aux")
    aux(A)

def tail(A, role):
    if role == "main":
        common(A)
        body(A)
    else:
        side_entry(A, True)
        A("s_branch L_p2_go")

def gen_standalone(A, KN):
    L = V_L
    A(f".globl {KN}\n.p2align 8\n.type {KN},@function\n{KN}:")
    A(f"s_cmp_ge_u32 s2, 256\ns_cbranch_scc1 L_end_{KN}")
    A(f"""
    s_load_dwordx4 s[36:39], s[0:1], 0
    s_load_dwordx4 s[44:47], s[0:1], 64
    s_load_dwordx2 s[60:61], s[0:1], 16
    s_load_dwordx2 s[64:65], s[0:1], 56
    v_and_b32 {v(L)}, 63, v0
    v_lshrrev_b32 v2, 6, v0
    s_nop 0
    v_readfirstlane_b32 {s(S_W)}, v2
    """)
    p1.decode(A)
    A(f"""
    s_waitcnt lgkmcnt(0)
    s_mov_b32 s12, s46
    s_mov_b32 s13, s47
    s_mov_b32 s14, {WS_USED}
    s_mov_b32 s15, 0x20000
    v_lshlrev_b32 v92, 2, {v(L)}
    v_add_u32 v92, {LFL}, v92
    v_mov_b32 v93, 0
    ds_write_b32 v92, v93
    s_mov_b32 {s(S_TYPE)}, 2
    s_cmp_eq_u32 {s(p1.S_CIDX)}, 15
    s_cbranch_scc0 L_k2_main
    s_mov_b32 {s(S_TYPE)}, 3
    """)
    side_entry(A, False)
    A("s_branch L_p2_go")
    A.label("L_k2_main")
    common(A)
    A("s_waitcnt lgkmcnt(0)\ns_barrier")
    body(A)
    A.label(f"L_end_{KN}")
    A("s_endpgm")
```

```python
import sys
from asmlib import Asm, check_hazards, Prof
from common2 import *
import p1

def header(launches):
    h = open('cdna_kernels/' + NAME + '.s.ref').read().split('\n')
    out = []
    for ln in h:
        if ln.startswith('; @launch') or ln.startswith('; Override') or ln.startswith('; grid='): continue
        if not ln.startswith(';'): break
        out.append(ln)
    for k, g, b, lds in launches:
        if k == NAME + "_kernel":
            out.append(f"; @launch grid=({g},1,1) block=({b},1,1) lds={lds}")
        else:
            out.append(f"; @launch kernel={k} grid=({g},1,1) block=({b},1,1) lds={lds}")
    return "\n".join(out) + "\n"

def build(path, mode):
    A = Asm()
    A('.amdgcn_target "amdgcn-amd-amdhsa--gfx950"\n.text')
    launches, descs = [], []
    if mode in ("p1", "split"):
        def tail(A, role):
            p1.lflush(A); Prof.flush(A, 12, "s3", 6); A("s_endpgm")
        p1.gen_p1(A, "k1_kernel", tail)
        launches.append(("k1_kernel", 256, 512, p1.LDS_BYTES)); descs.append(kernel_desc("k1_kernel", 256, 96))
    if mode == "split":
        import p2
        p2.gen_standalone(A, "k2_kernel")
        launches.append(("k2_kernel", 256, 512, p1.LDS_BYTES)); descs.append(kernel_desc("k2_kernel", 256, 96))
    if mode == "fused":
        import p2
        kn = NAME + "_kernel"
        p1.gen_p1(A, kn, p2.tail)
        launches.append((kn, 256, 512, p1.LDS_BYTES)); descs.append(kernel_desc(kn, 256, 96))
    probs = check_hazards(A.lines)
    for p in probs: print("HAZARD", p)
    txt = header(launches) + A.text() + '.section .rodata,"a"\n.p2align 6\n' + "\n.p2align 6\n".join(descs)
    open(path, "w").write(txt)
    return probs

if __name__ == "__main__":
    opts = sys.argv[3:]
    if "prof" in opts: Prof.on = True
    if "nopre" in opts: p1.PRELOAD = False
    if "lprof" in opts: p1.LPROF = True
    if "eprof" in opts: p1.EPROF = True
    if "nopf" in opts: p1.CODEPF = False
    if "xtest" in opts: p1.XTEST = True
    if "notouch" in opts: p1.TOUCH = False; p1.NT = 0
    if "nocount" in opts: p1.NOCOUNT = True
    if "touch" in opts: p1.TOUCH = True; p1.NT = 2
    if "noprio" in opts:
        import p2
        p2.SETPRIO = False
    if "prof2" in opts:
        import p2
        p2.PROF2 = True
    if "dutykv" in opts:
        import p2
        p2.DUTY = 2
    if "diagkf" in opts:
        import p2
        p2.DIAGKF = True
    build(sys.argv[1], sys.argv[2])
```
